```python
import torch

def _softmax(x, axis=-1):
    return torch.softmax(x, dim=axis)

def _gelu(x):
    return torch.nn.functional.gelu(x, approximate='tanh')

def _silu(x):
    return torch.nn.functional.silu(x)

def _sigmoid(x):
    return torch.sigmoid(x)

def _layernorm(x, axis=-1, eps=1e-05):
    m = x.mean(dim=axis, keepdim=True)
    v = x.var(dim=axis, keepdim=True, unbiased=False)
    return (x - m) / torch.sqrt(v + eps)

def _scatter_add(tgt, idx, src, axis=0):
    return tgt.clone().index_add_(axis, idx, src)

def _segment_sum(src, seg, n):
    out = torch.zeros((n,) + src.shape[1:], dtype=src.dtype)
    return out.index_add_(0, seg, src)

def _pad(x, pw):
    flat = tuple((v for pair in reversed(pw) for v in pair))
    return torch.nn.functional.pad(x, flat)
kernel_name = 'adaLN_cond__softmax_full_mha__dense_activation_silu__prompt'

def setup_inputs():

    _w = lambda a: (lambda t: t.to(torch.bfloat16) if t.is_floating_point() else t)(torch.as_tensor(a))

    def _A_setup():
        B, S, D = (1, 2048, 512)
        return {'x': _w((lambda *s: torch.randn(*s, dtype=torch.bfloat16) * 0.05)(B, S, D)), 'wqkv': _w((lambda *s: torch.randn(*s, dtype=torch.bfloat16) * 0.05)(D, 3 * D)), 'wo': _w((lambda *s: torch.randn(*s, dtype=torch.bfloat16) * 0.05)(D, D))}
    _A_in = _A_setup()

    def _B_setup():
        B, S, D, F = (1, 2048, 512, 1792)
        return {'x': _w((lambda *s: torch.randn(*s, dtype=torch.bfloat16) * 0.05)(B, S, D)), 'w1': _w((lambda *s: torch.randn(*s, dtype=torch.bfloat16) * 3.2)(D, F) * D ** (-0.5)), 'w2': _w((lambda *s: torch.randn(*s, dtype=torch.bfloat16) * 0.2)(F, D) * F ** (-0.5))}
    _B_in = _B_setup()
    return {'A_x': _A_in['x'], 'A_wqkv': _A_in['wqkv'], 'A_wo': _A_in['wo'], 'B_x': _B_in['x'], 'B_w1': _B_in['w1'], 'B_w2': _B_in['w2'], 'c': _w((lambda *s: torch.randn(*s, dtype=torch.bfloat16) * 0.1)(1, 512) * 8.0), 'w_mod': _w((lambda *s: torch.randn(*s, dtype=torch.bfloat16) * 0.1)(512, 6 * 512) * 512 ** (-0.5) * 8.0)}

def reference(A_x, A_wqkv, A_wo, B_x, B_w1, B_w2, c, w_mod):

    def _A_ref(x, wqkv, wo):
        B, S, D = x.shape
        H = 32
        Dh = D // H
        qkv = (lambda x, *d: x.permute(*d))((x @ wqkv).reshape(B, S, 3, H, Dh), 2, 0, 3, 1, 4)
        q, k, v = (qkv[0], qkv[1], qkv[2])
        scale = Dh ** (-0.5)
        scores = torch.einsum('bhqd,bhkd->bhqk', q, k) * scale
        p = _softmax(scores, axis=-1)
        o = torch.einsum('bhqk,bhkd->bhqd', p, v)
        return (lambda x, *d: x.permute(*d))(o, 0, 2, 1, 3).reshape(B, S, D) @ wo

    def _B_ref(x, w1, w2):
        h = torch.einsum('bsd,df->bsf', x, w1)
        h = _silu(h)
        out = torch.einsum('bsf,fd->bsd', h, w2)
        return out
    x = A_x
    mod = (_silu(c) @ w_mod).reshape(c.shape[0], 6, 1, -1)
    sa, ca, ga, sb, cb, gb = (mod[:, 0].clone(), mod[:, 1].clone(), mod[:, 2].clone(), mod[:, 3].clone(), mod[:, 4].clone(), mod[:, 5].clone())
    h = _layernorm(x, axis=-1) * (1 + ca) + sa
    x = x + ga * _A_ref(h, A_wqkv, A_wo)
    h = _layernorm(x, axis=-1) * (1 + cb) + sb
    x = x + gb * _B_ref(h, B_w1, B_w2)
    return x
```

```python
import re, sys
from collections import namedtuple

REG = re.compile(r'^(-|\|)?(abs\()?(-)?([vas])(\d+|\[(\d+):(\d+)\])\)?\|?$')
TRANS = ('v_exp_f32', 'v_log_f32', 'v_rcp_f32', 'v_rsq_f32', 'v_sqrt_f32', 'v_sin_f32', 'v_cos_f32', 'v_exp_f16', 'v_rcp_f16', 'v_rcp_iflag_f32')

def regs_of(tok):
    tok = tok.strip()
    if tok in ('vcc', 'vcc_lo', 'vcc_hi'): return {'vcc'}
    if tok in ('exec', 'exec_lo', 'exec_hi'): return {'exec'}
    if tok == 'm0': return {'m0'}
    if tok == 'scc': return {'scc'}
    m = REG.match(tok)
    if not m: return set()
    k = m.group(4)
    if m.group(6) is not None:
        return {f'{k}{i}' for i in range(int(m.group(6)), int(m.group(7)) + 1)}
    return {f'{k}{int(m.group(5))}'}

class Ins:
    __slots__ = ('line', 'text', 'op', 'ops', 'mods', 'defs', 'uses', 'cls', 'passes', 'srcA', 'srcB', 'srcC', 'D', 'target', 'sdata', 'lds')

def split_ops(s):
    out, depth, cur = [], 0, ''
    for ch in s:
        if ch in '[(': depth += 1
        if ch in '])': depth -= 1
        if ch == ',' and depth == 0:
            out.append(cur.strip()); cur = ''
        else: cur += ch
    if cur.strip(): out.append(cur.strip())
    return out

def parse(text, line):
    I = Ins(); I.line = line; I.text = text
    parts = text.split(None, 1)
    op = parts[0]; rest = parts[1] if len(parts) > 1 else ''
    I.op = op
    ops = split_ops(rest)
    mods = ''
    if ops:
        last = ops[-1].split()
        if len(last) > 1 and not op.startswith('s_waitcnt'):
            ops[-1] = last[0]; mods = ' '.join(last[1:])
    I.ops = ops; I.mods = mods
    I.defs = set(); I.uses = set(); I.passes = 0
    I.srcA = I.srcB = I.srcC = I.D = set(); I.target = None; I.sdata = set(); I.lds = False
    R = [regs_of(o) for o in ops]
    base = re.sub(r'_(e32|e64|dpp|sdwa)$', '', op)
    if op.startswith('v_mfma') or op.startswith('v_smfmac'):
        I.cls = 'mfma'
        I.passes = 8 if '32x32' in op else 4
        I.D = R[0]; I.srcA = R[1]; I.srcB = R[2]
        if op.startswith('v_smfmac'):
            I.srcC = R[0]; I.srcB = R[2] | R[3]
        else: I.srcC = R[3]
        I.defs = set(I.D); I.uses = I.srcA | I.srcB | I.srcC
    elif op.startswith('v_'):
        I.cls = 'valu'
        if base.startswith('v_cmp'):
            I.defs = set(R[0]); I.uses = set().union(*R[1:])
            if base.startswith('v_cmpx'): I.defs.add('exec')
        elif base in ('v_readfirstlane_b32', 'v_readlane_b32'):
            I.defs = set(R[0]); I.uses = set().union(*R[1:])
        elif base.startswith('v_permlane') and 'swap' in base:
            I.defs = R[0] | R[1]; I.uses = R[0] | R[1]
        elif base in ('v_add_co_u32', 'v_sub_co_u32', 'v_addc_co_u32', 'v_subb_co_u32', 'v_div_scale_f32', 'v_mad_u64_u32'):
            I.defs = R[0] | R[1]; I.uses = set().union(*R[2:])
        elif base == 'v_nop':
            pass
        else:
            I.defs = set(R[0]); I.uses = set().union(*R[1:]) if len(R) > 1 else set()
            if base.startswith(('v_fmac', 'v_dot2c', 'v_pk_fmac', 'v_writelane')) or 'UNUSED_PRESERVE' in mods or op.endswith('_dpp') or 'row_' in mods or 'quad_perm' in mods:
                I.uses |= R[0]
            if base == 'v_cndmask_b32' and len(ops) == 3: I.uses.add('vcc')
        I.uses.add('exec')
    elif op.startswith(('buffer_', 'global_')):
        I.cls = 'vmem'
        lds = ' lds' in (' ' + mods) or 'load_lds' in op
        I.lds = lds
        if op in ('buffer_inv', 'buffer_wbl2'):
            pass
        elif lds:
            I.uses = set().union(*R) | {'m0'}
        elif 'load' in op:
            I.defs = set(R[0]); I.uses = set().union(*R[1:])
            if 'd16' in op: I.uses |= R[0]
        elif 'atomic' in op:
            I.uses = set().union(*R)
            if 'sc0' in mods: I.defs = set(R[0] if op.startswith('buffer') else R[0])
            I.sdata = R[0] if op.startswith('buffer') else R[1]
        else:
            I.uses = set().union(*R)
            I.sdata = R[0] if op.startswith('buffer') else R[1]
        I.uses.add('exec')
    elif op.startswith('ds_'):
        I.cls = 'ds'
        if 'read' in op or 'bpermute' in op or 'permute' in op or 'swizzle' in op:
            I.defs = set(R[0]); I.uses = set().union(*R[1:])
            if 'd16' in op: I.uses |= R[0]
        else:
            I.uses = set().union(*R)
        I.uses.add('exec')
    elif op.startswith(('s_load', 's_buffer_load', 's_memtime', 's_memrealtime')):
        I.cls = 'smem'
        I.defs = set(R[0]); I.uses = set().union(*R[1:]) if len(R) > 1 else set()
    elif op.startswith('s_'):
        I.cls = 'salu'
        if op in ('s_branch',) or op.startswith('s_cbranch'):
            I.cls = 'branch'; I.target = ops[0]
            if 'vcc' in op: I.uses = {'vcc'}
            if 'exec' in op: I.uses = {'exec'}
        elif op in ('s_nop', 's_waitcnt', 's_barrier', 's_endpgm', 's_sleep', 's_setprio', 's_sethalt'):
            I.cls = op[2:]
        elif op.startswith('s_cmp') or op.startswith('s_bitcmp'):
            I.uses = set().union(*R)
        else:
            I.defs = set(R[0]); I.uses = set().union(*R[1:]) if len(R) > 1 else set()
            if 'saveexec' in op: I.defs.add('exec'); I.uses.add('exec')
            if op in ('s_addk_i32', 's_mulk_i32', 's_cmovk_i32', 's_cmov_b32', 's_cmov_b64'): I.uses |= R[0]
    else:
        raise ValueError(f'line {line}: unknown instruction {text}')
    return I

def load(asm):
    ins, labels, entries = [], {}, []
    in_text = True
    for n, raw in enumerate(asm.split('\n'), 1):
        t = raw.split(';')[0].strip()
        if not t: continue
        if t.startswith('.section') or t.startswith('.amdhsa_kernel'): in_text = False
        if t == '.text': in_text = True
        if t.startswith('.'): continue
        if not in_text: continue
        m = re.match(r'^([\w.$]+):\s*(.*)$', t)
        if m:
            labels[m.group(1)] = len(ins)
            if m.group(1).endswith('_kernel'): entries.append(len(ins))
            t = m.group(2)
            if not t: continue
        ins.append(parse(t, n))
    return ins, labels, entries

def succ(ins, labels, i):
    I = ins[i]
    if I.cls == 'endpgm': return []
    if I.cls == 'branch':
        t = labels[I.target]
        return [t] if I.op == 's_branch' else [i + 1, t]
    return [i + 1] if i + 1 < len(ins) else []

def states(I):
    if I.cls == 'nop': return int(I.ops[0], 0) + 1
    return 1

def isv(r): return r[0] in 'va' and r[1:].isdigit()
def iss(r): return (r[0] == 's' and r[1:].isdigit()) or r == 'vcc'

def need(P, C):
    n = 0; why = ''
    def up(k, w):
        nonlocal n, why
        if k > n: n, why = k, w
    cb = re.sub(r'_(e32|e64|dpp|sdwa)$', '', C.op)
    if P.cls == 'valu':
        vd = {r for r in P.defs if isv(r)}
        sd = {r for r in P.defs if iss(r)}
        if C.cls == 'mfma' and vd & C.uses: up(2, 'valu->mfma')
        if C.cls == 'valu':
            if vd & C.uses:
                if cb.startswith('v_permlane'): up(2, 'valu->permlane')
                if C.op.endswith('_dpp') or 'row_' in C.mods or 'quad_perm' in C.mods: up(2, 'valu->dpp')
                if cb in ('v_readlane_b32', 'v_readfirstlane_b32'): up(1, 'valu->readlane')
                pb = re.sub(r'_(e32|e64|dpp|sdwa)$', '', P.op)
                if pb in TRANS and cb not in TRANS: up(1, 'trans->valu')
                if 'dst_sel' in P.mods or ('op_sel' in P.mods and not pb.startswith('v_pk')): up(1, 'opsel->valu')
                if pb.startswith('v_dot') and pb != cb: up(3, 'dot->other')
                if pb.startswith('v_dot') and pb == cb and vd & (set().union(*[regs_of(o) for o in C.ops[1:3]])): up(3, 'dot->dot ab')
            if vd & C.defs and re.sub(r'_(e32|e64|dpp|sdwa)$', '', P.op).startswith('v_dot') and not cb.startswith('v_dot'): up(3, 'dot->waw')
            if sd & C.uses:
                up(4 if cb in ('v_readlane_b32', 'v_writelane_b32') else 2, 'valu sgpr->valu')
        if C.cls in ('vmem', 'ds') and vd & C.uses and re.sub(r'_(e32|e64|dpp|sdwa)$', '', P.op).startswith('v_dot'): up(3, 'dot->mem')
        if C.cls == 'vmem' and sd & C.uses: up(5, 'valu sgpr->vmem')
        if 'exec' in P.defs:
            if C.cls == 'mfma': up(4, 'valu exec->mfma')
            if C.cls == 'valu' and (cb.startswith(('v_readlane', 'v_readfirstlane', 'v_writelane', 'v_permlane'))): up(4, 'cmpx->lane')
            if C.cls == 'valu' and (C.op.endswith('_dpp') or 'row_' in C.mods): up(5, 'cmpx->dpp')
    if P.cls == 'mfma':
        far = 12 if P.passes == 8 else 8
        if C.cls == 'mfma':
            if P.D & (C.srcA | C.srcB): up(far, 'mfma D->AB')
            if P.D & C.srcC and not (P.D == C.srcC and P.passes == C.passes): up(far - 2, 'mfma D->C partial')
            if P.D & C.D and not (P.D & C.srcC) and P.passes != C.passes: up(far, 'mfma D waw')
        elif C.cls in ('valu', 'vmem', 'ds'):
            if P.D & (C.uses | C.defs): up(far, 'mfma D->valu/mem')
            if C.cls == 'valu' and P.srcC & C.defs: up(7 if P.passes == 8 else 3, 'mfma srcC WAR')
    if P.cls == 'salu' and 'm0' in P.defs and C.cls == 'vmem' and C.lds: up(1, 'm0->ldsdma')
    if P.cls == 'vmem' and P.sdata and len(P.sdata) >= 3 and P.sdata & C.defs:
        up(2 if C.cls in ('valu', 'mfma') else 1, 'wide store WAR')
    return n, why

def check_hazards(ins, labels):
    errs = []
    for i, P in enumerate(ins):
        if P.cls not in ('valu', 'mfma', 'salu', 'vmem'): continue
        if P.cls == 'salu' and 'm0' not in P.defs: continue
        if P.cls == 'vmem' and not P.sdata: continue
        lim = 12 if P.cls == 'mfma' else 5
        stack = [(j, 0) for j in succ(ins, labels, i)]
        seen = set()
        while stack:
            j, d = stack.pop()
            if d >= lim or (j, d) in seen or j >= len(ins): continue
            seen.add((j, d))
            n, why = need(P, ins[j])
            if n > d: errs.append((ins[j].line, f'hazard {why}: need {n} have {d}: [{P.line}] {P.text}  ->  [{ins[j].line}] {ins[j].text}'))
            for k in succ(ins, labels, j): stack.append((k, d + states(ins[j])))
    return sorted(set(errs))

def check_waits(ins, labels, entries, maxvisit=3):
    errs = set()
    for e in entries:
        visits = {}
        stack = [(e, (), (), False)]
        seen = set()
        while stack:
            i, vm, lg, smem = stack.pop()
            while True:
                if i >= len(ins): break
                I = ins[i]
                key = (i, vm, lg)
                if I.cls == 'branch' or i in labels_set:
                    if key in seen: break
                    seen.add(key)
                    visits[i] = visits.get(i, 0) + 1
                    if visits[i] > 200: break
                touch = I.uses | I.defs
                for q, nm in ((vm, 'vmcnt'), (lg, 'lgkmcnt')):
                    for (regs, ln, kind) in q:
                        if regs & touch and not (kind == 'ds' and I.cls == 'ds' and not (regs & I.uses)) and not (kind == 'vm' and I.cls == 'vmem' and not (regs & I.uses)):
                            errs.add((I.line, f'{nm}: [{I.line}] {I.text} touches {sorted(regs & touch)[:4]} loaded at line {ln} without wait'))
                if I.cls == 'waitcnt':
                    t = ' '.join(I.ops) + ' ' + I.mods
                    m = re.search(r'vmcnt\((\d+)\)', t)
                    if m:
                        n = int(m.group(1)); vm = vm[len(vm) - n:] if n < len(vm) else vm
                        if n == 0: vm = ()
                    m = re.search(r'lgkmcnt\((\d+)\)', t)
                    if m:
                        n = int(m.group(1))
                        if n == 0: lg = ()
                        elif not any(k == 'smem' for _, _, k in lg): lg = lg[len(lg) - n:] if n < len(lg) else lg
                elif I.cls == 'vmem' and I.op not in ('buffer_inv', 'buffer_wbl2'):
                    vm = vm + ((frozenset(I.defs), I.line, 'vm'),)
                    if len(vm) > 63:
                        errs.add((I.line, f'more than 63 vmem outstanding at [{I.line}]')); vm = vm[-63:]
                elif I.cls == 'ds':
                    lg = lg + ((frozenset(I.defs), I.line, 'ds'),)
                    if len(lg) > 40: lg = lg[-40:]
                elif I.cls == 'smem':
                    lg = lg + ((frozenset(I.defs), I.line, 'smem'),)
                s = succ(ins, labels, i)
                if not s: break
                for k in s[1:]: stack.append((k, vm, lg, smem))
                i = s[0]
    return sorted(errs)

def check(asm, quiet=False):
    global labels_set
    ins, labels, entries = load(asm)
    labels_set = set(labels.values())
    e1 = check_hazards(ins, labels)
    e2 = check_waits(ins, labels, entries)
    for _, m in e1 + e2: print(m)
    if not quiet: print(f'asmcheck: {len(ins)} instructions, {len(e1)} hazards, {len(e2)} wait problems')
    return len(e1) + len(e2)

if __name__ == '__main__':
    sys.exit(1 if check(open(sys.argv[1]).read()) else 0)
```

```python
from gen import *

QA, QB, KR, V0, V1, SA, SB, OA, OB, IDX = 12, 16, 20, 24, 28, 32, 48, 64, 80, 9
XP = 96
def EXP(r): return f"v_exp_f32 v{r}, v{r}"
def SM(O, V, S): return f"v_smfmac_f32_32x32x32_bf16 {vr(O,16)}, {vr(V,4)}, {vr(S,8)}, v{IDX}"
def QK(S, Q, c="0"): return f"v_mfma_f32_32x32x16_bf16 {vr(S,16)}, {vr(KR,4)}, {vr(Q,4)}, {c}"

def phase2(g, opt):
    g(f"""s_and_b32 s36, {S_W}, 3
          s_lshr_b32 s37, {S_W}, 2
          s_lshl_b32 s32, {S_J}, 3
          s_lshl_b32 s33, s36, 1
          s_add_u32 s32, s32, s33
          s_add_u32 s58, s32, s37
          s_xor_b32 s33, s58, 1
          s_lshl_b32 s34, {S_G}, 16
          s_add_u32 s35, s34, {QF}
          s_lshl_b32 s32, s58, 10
          s_add_u32 s42, s35, s32
          s_lshl_b32 s33, s33, 10
          s_add_u32 s43, s35, s33
          s_and_b32 s32, {S_W}, 1
          s_mul_i32 s38, s32, {VF - KF}
          s_add_u32 s38, s38, s34
          s_add_u32 s38, s38, {KF}
          s_bfe_u32 s33, {S_W}, 0x10001
          s_lshl_b32 s34, s33, 15
          s_add_u32 s38, s38, s34
          s_mul_i32 s44, s32, {VSTR - 1024}
          s_add_u32 s44, s44, 1024
          s_lshl_b32 s33, s33, 5
          s_add_u32 s33, s33, s37
          s_mul_i32 s39, s33, s44
          s_mul_i32 s32, s32, {L_V}
          s_add_u32 s39, s39, s32
          s_lshl_b32 s44, s44, 1
          s_lshl_b32 s45, {S_J}, 2
          s_add_u32 s45, s45, s37
          s_lshl_b32 s32, s37, 15
          v_add_u32 v4, s32, {V_L16}
          s_mul_i32 s32, s37, {32*VSTR}
          s_add_u32 s32, s32, {L_V}
          v_lshrrev_b32 v10, 5, {V_LANE}
          v_lshlrev_b32 v5, 8, v10
          v_and_b32 v10, 15, {V_LANE}
          v_lshl_add_u32 v5, v10, 4, v5
          v_add_u32 v6, 512, v5
          v_and_b32 v10, 16, {V_LANE}
          v_cmp_ne_u32 vcc, 0, v10
          v_mov_b32 v10, 1024
          v_mov_b32 v{IDX}, 0xdddddddd
          v_cndmask_b32 v5, v5, v10, vcc
          v_cndmask_b32 v6, v6, v10, vcc
          v_add_u32 v5, s32, v5
          v_add_u32 v6, s32, v6
          v_mul_u32_u24 v7, {VSTR}, {V_LANE}
          v_add_u32 v7, {L_V + 1024}, v7""")
    for i in range(4): g(f"v_mov_b32 v{V0+i}, 0x3f803f80")
    g(f"ds_write_b128 v7, {vr(V0,4)}")
    for i in range(4): g(f"v_mov_b32 v{V1+i}, 0")
    for i in range(16): g(f"v_mov_b32 v{OA+i}, 0\nv_mov_b32 v{OB+i}, 0")
    for i in range(8, 16): g(f"v_mov_b32 v{SB+i}, 0")
    g("s_barrier")
    stamp(g, opt, 7)
    g(f"""buffer_load_dwordx4 {vr(QA,4)}, {V_L16}, {WS}, s42 offen sc1
          buffer_load_dwordx4 {vr(QB,4)}, {V_L16}, {WS}, s43 offen sc1""")
    for r in range(16):
        g(f"""s_and_b32 s45, s45, 31
              s_lshl_b32 s32, s45, 10
              s_add_u32 s32, s32, s38
              s_mov_b32 m0, s39
              s_add_u32 s45, s45, 2
              buffer_load_dwordx4 {V_L16}, {WS}, s32 offen sc1 lds
              s_add_u32 s39, s39, s44""")
    g(f"""s_mul_i32 s32, {S_J}, 7
          s_add_u32 s32, s32, {S_W}
          s_lshl_b32 s38, s32, 15
          s_add_u32 s38, s38, {W1F}
          s_cmp_eq_u32 {S_W}, 7
          s_cselect_b32 s38, {BIG}, s38
          s_lshl_b32 s45, {S_J}, 2""")
    g(f"""v_and_b32 v10, 31, {V_LANE}
          v_lshlrev_b32 v8, 10, v10
          v_lshrrev_b32 v10, 5, {V_LANE}
          v_lshl_add_u32 v8, v10, 3, v8
          s_lshl_b32 s32, {S_G}, 1
          s_and_b32 s33, {S_W}, 1
          s_add_u32 s59, s32, s33
          s_lshl_b32 s32, {S_J}, 2
          s_and_b32 s33, {S_W}, 2
          s_add_u32 s32, s32, s33
          s_add_u32 s60, s32, s37
          s_lshl_b32 s46, s59, 15
          s_lshl_b32 s32, s60, 5
          s_add_u32 s46, s46, s32""")
    g(f"""s_waitcnt vmcnt(15) lgkmcnt(0)
          s_barrier""")
    stamp(g, opt, 8)
    g(f"""ds_read_b128 {vr(KR,4)}, v4
          ds_read_b128 {vr(V0,4)}, v5
          s_waitcnt lgkmcnt(1)
          {QK(SA, QA)}
          s_nop 11""")
    T = 32
    w1q = 0
    for t in range(T):
        if t == 1: g("s_waitcnt vmcnt(12)\ns_barrier")
        if t == 7:
            lab = g.lab("nofw")
            g(f"""s_waitcnt vmcnt(0)
                  s_cmp_lg_u32 {S_W}, 0
                  s_cbranch_scc1 {lab}
                  v_lshlrev_b32 v7, 2, {V_LANE}
                  s_mul_i32 s32, {S_J}, 28
                  s_add_u32 s32, s32, {FW}""")
            poll_flags(g, "v7", "s32", "0x7f")
            g(f"{lab}:\ns_barrier")
        extra = []
        if t >= 8:
            n = 2 if t < 16 else 1
            for _ in range(n):
                if w1q < 32:
                    extra.append(f"""s_and_b32 s45, s45, 31
                        s_lshl_b32 s32, s45, 10
                        s_add_u32 s32, s32, s38
                        s_add_u32 s45, s45, 1
                        buffer_load_dwordx4 {ar(4*w1q,4)}, {V_L16}, {WS}, s32 offen sc1""")
                    w1q += 1
        if t == 7:
            extra.append(f"""buffer_load_dwordx2 {vr(XP,2)}, v8, {XS}, s46 offen
                             buffer_load_dwordx2 {vr(XP+2,2)}, v8, {XS}, s46 offen offset:16""")
        g(EXP(SA)); g(EXP(SA + 1))
        g(SM(OB, V1, SB + 8))
        g(QK(SB, QB))
        g(f"ds_read_b128 {vr(V1,4)}, v6 offset:{t*VSTR}")
        g(f"ds_read_b128 {vr(KR,4)}, v4 offset:{(t+1)*1024}")
        for i in range(2, 10): g(EXP(SA + i))
        g("s_waitcnt lgkmcnt(2)")
        g(SM(OA, V0, SA))
        for i in range(10, 16): g(EXP(SA + i))
        if extra: g(extra.pop(0))
        g(EXP(SB)); g(EXP(SB + 1))
        g("s_waitcnt lgkmcnt(0)")
        g(SM(OA, V1, SA + 8))
        g(QK(SA, QA))
        for i in range(2, 10): g(EXP(SB + i))
        g(SM(OB, V0, SB))
        g(f"ds_read_b128 {vr(V0,4)}, v5 offset:{(t+1)*VSTR}")
        if extra: g(extra.pop(0))
        for i in range(10, 16): g(EXP(SB + i))
    assert w1q == 32
    g(f"""s_mul_i32 s32, {S_W}, 2304
          s_add_u32 s32, s32, {L_EX}
          {SM(OB, V1, SB + 8)}
          v_add_u32 v7, s32, {V_L16}
          v_lshl_add_u32 v10, {V_LANE}, 2, s32
          s_xor_b32 s33, {S_W}, 4
          s_mul_i32 s33, s33, 2304
          s_add_u32 s33, s33, {L_EX}
          v_add_u32 v11, s33, {V_L16}
          v_lshl_add_u32 v3, {V_LANE}, 2, s33
          s_nop 5""")
    stamp(g, opt, 9)
    g(f"""ds_write_b128 v7, {vr(OB,4)}
          ds_write_b128 v7, {vr(OB+4,4)} offset:1024
          ds_write_b32 v10, v{OB+8} offset:2048
          s_waitcnt lgkmcnt(0)
          s_barrier
          ds_read_b128 {vr(SB,4)}, v11
          ds_read_b128 {vr(SB+4,4)}, v11 offset:1024
          ds_read_b32 v{SB+8}, v3 offset:2048
          s_lshl_b32 s32, s58, 5
          s_add_u32 s32, s32, {S_G}
          s_lshl_b32 s32, s32, 10
          s_add_u32 s42, s32, {OF}
          s_waitcnt lgkmcnt(0)""")
    for i in range(9): g(f"v_add_f32 v{OA+i}, v{OA+i}, v{SB+i}")
    g(f"v_add_f32 v10, abs(v{OA}), abs(v{OA+1})")
    for i in range(2, 8): g(f"v_add_f32 v10, v10, abs(v{OA+i})")
    g(f"""v_cmp_nle_f32 vcc, {f32(2.0**-64)}, v{OA+8}
          s_mov_b32 s32, {f32(2.0**100)}
          v_cmp_nge_f32 s[40:41], s32, v{OA+8}
          s_or_b64 vcc, vcc, s[40:41]
          s_mov_b32 s32, {f32(2.0**126)}
          v_cmp_nge_f32 s[40:41], s32, v10
          s_or_b64 vcc, vcc, s[40:41]""")
    if opt.get("force_fb"): g("s_mov_b64 vcc, -1")
    g(f"""s_cbranch_vccnz L_fallback
          L_fb_ret:
          v_rcp_f32 v10, v{OA+8}
          s_nop 0""")
    for i in range(8): g(f"v_mul_f32 v{OA+i}, v{OA+i}, v10")
    for i in range(4): g(f"v_cvt_pk_bf16_f32 v{SB+i}, v{OA+2*i}, v{OA+2*i+1}")
    g(f"""buffer_store_dwordx4 {vr(SB,4)}, {V_L16}, {WS}, s42 offen sc1
          s_waitcnt vmcnt(0)
          s_barrier""")
    stamp(g, opt, 10)
    opt["_tail"].append(fallback)

def fallback(g):
    g(f"""L_fallback:
          v_mov_b32 v3, {V_L16}
          v_mov_b32 v10, 0xff800000
          s_mov_b32 s32, 64
          L_fb1:
          ds_read_b128 {vr(KR,4)}, v3
          v_add_u32 v3, 1024, v3
          s_waitcnt lgkmcnt(0)
          {QK(SA, QA)}
          s_nop 11""")
    for i in range(0, 16, 2): g(f"v_max3_f32 v10, v10, v{SA+i}, v{SA+i+1}")
    g(f"""s_sub_u32 s32, s32, 1
          s_cmp_lg_u32 s32, 0
          s_cbranch_scc1 L_fb1
          v_mov_b32 v11, v10
          s_nop 1
          v_permlane32_swap_b32 v10, v11
          v_max_f32 v10, v10, v11""")
    for i in range(16): g(f"v_sub_f32 v{SB+i}, 0, v10\nv_mov_b32 v{OA+i}, 0")
    g(f"""s_mul_i32 s33, s37, {32*VSTR}
          v_subrev_u32 v7, s33, v5
          v_subrev_u32 v11, s33, v6
          v_mov_b32 v3, {V_L16}
          s_mov_b32 s32, 64
          L_fb2:
          ds_read_b128 {vr(KR,4)}, v3
          ds_read_b128 {vr(V0,4)}, v7
          ds_read_b128 {vr(V1,4)}, v11
          v_add_u32 v3, 1024, v3
          v_add_u32 v7, {VSTR}, v7
          v_add_u32 v11, {VSTR}, v11
          s_waitcnt lgkmcnt(0)
          {QK(SA, QA, vr(SB,16))}
          s_nop 11""")
    for i in range(16): g(EXP(SA + i))
    g(f"""s_nop 1
          {SM(OA, V0, SA)}
          {SM(OA, V1, SA + 8)}
          s_sub_u32 s32, s32, 1
          s_cmp_lg_u32 s32, 0
          s_cbranch_scc1 L_fb2
          s_nop 11
          s_branch L_fb_ret""")

L_O, L_WO, L_EX3 = 0, 65536, 131072
def phase3(g, opt):
    g(f"""s_cmp_lg_u32 {S_W}, 0
          s_cbranch_scc1 L_p3_a
          s_lshl_b32 s32, {S_J}, 5
          s_add_u32 s32, s32, {S_G}
          s_lshl_b32 s32, s32, 2
          s_add_u32 s32, s32, {FO}""")
    set_flag(g, "s32")
    g(f"""L_p3_a:
          s_and_b32 s32, {S_W}, 1
          s_bfe_u32 s33, {S_W}, 0x10001
          s_lshl_b32 s34, s32, 1
          s_add_u32 s34, s34, s33
          s_lshl_b32 s34, s34, 4             ; a*32 + kh'*16
          s_add_u32 s39, s34, s37
          s_lshl_b32 s39, s39, 10
          s_lshl_b32 s34, s34, 10
          s_lshl_b32 s35, {S_J}, 16
          s_add_u32 s38, s34, s35
          s_add_u32 s38, s38, {WOF}          ; (2j+a)*32*1024 + kh'*16*1024
          s_lshl_b32 s35, {S_G}, 16
          s_add_u32 s43, s34, s35
          s_add_u32 s43, s43, {OF}           ; (2g+a)*32*1024 + kh'*16*1024
          s_lshl_b32 s44, {S_J}, 1
          s_add_u32 s44, s44, s37
          s_mov_b32 s45, s44""")
    def dma(base, lds0):
        for r in range(8):
            g(f"""s_and_b32 s45, s45, 15
                  s_lshl_b32 s32, s45, 10
                  s_add_u32 s32, s32, {base}
                  s_add_u32 m0, s39, {lds0 + r*2048}
                  s_add_u32 s45, s45, 2
                  buffer_load_dwordx4 {V_L16}, {WS}, s32 offen sc1 lds""")
    dma("s38", L_WO)
    g(f"""s_cmp_lg_u32 {S_W}, 0
          s_cbranch_scc1 L_p3_b
          v_lshlrev_b32 v6, 2, {V_LANE}
          s_lshr_b32 s32, {S_G}, 2
          s_lshl_b32 s32, s32, 7
          s_add_u32 s32, s32, {FO}""")
    poll_flags(g, "v6", "s32", "-1")
    g(f"""L_p3_b:
          s_mov_b32 s45, s44
          s_barrier""")
    stamp(g, opt, 11)
    dma("s43", L_O)
    g(f"""v_lshrrev_b32 v10, 5, {V_LANE}
          v_lshlrev_b32 v7, 4, v10
          s_lshl_b32 s47, s60, 6
          s_add_u32 s32, s47, {MODG + 1024*4}
          buffer_load_dwordx4 v[100:103], v7, {WS}, s32 offen sc1
          buffer_load_dwordx4 v[104:107], v7, {WS}, s32 offen offset:32 sc1
          s_and_b32 s32, {S_W}, 1
          s_lshl_b32 s32, s32, 1
          s_add_u32 s32, s32, s37
          s_lshl_b32 s32, s32, 14
          v_add_u32 v4, s32, {V_L16}
          s_and_b32 s32, {S_W}, 2
          s_add_u32 s32, s32, s37
          s_lshl_b32 s32, s32, 14
          s_add_u32 s32, s32, {L_WO}
          v_add_u32 v5, s32, {V_L16}""")
    ACC = 32
    first = True
    for (k0, k1, vm) in ((0, 4, 8), (4, 10, 5), (10, 16, 2)):
        g(f"s_waitcnt vmcnt({vm})\ns_barrier")
        n = k1 - k0
        for kk in range(k0, k1):
            b = 48 + 8 * (kk - k0)
            g(f"ds_read_b128 {vr(b,4)}, v5 offset:{kk*1024}\nds_read_b128 {vr(b+4,4)}, v4 offset:{kk*1024}")
        for kk in range(k0, k1):
            b = 48 + 8 * (kk - k0)
            g(f"s_waitcnt lgkmcnt({2*(k1-1-kk)})")
            g(f"v_mfma_f32_32x32x16_bf16 {vr(ACC,16)}, {vr(b,4)}, {vr(b+4,4)}, {'0' if first else vr(ACC,16)}")
            first = False
    g(f"""s_lshl_b32 s32, {S_W}, 11
          s_add_u32 s32, s32, {L_EX3}
          v_add_u32 v4, s32, {V_L16}
          s_xor_b32 s32, s32, {4 << 11}
          v_add_u32 v5, s32, {V_L16}
          s_lshl_b32 s33, s59, 5
          s_add_u32 s33, s33, s60
          s_lshl_b32 s33, s33, 10
          s_add_u32 s42, s33, {X1F}
          s_cmp_lg_u32 s37, 0
          s_nop 2
          s_cbranch_scc1 L_p3_k1
          ds_write_b128 v4, {vr(ACC+8,4)}
          ds_write_b128 v4, {vr(ACC+12,4)} offset:1024
          s_branch L_p3_k2
          L_p3_k1:
          ds_write_b128 v4, {vr(ACC,4)}
          ds_write_b128 v4, {vr(ACC+4,4)} offset:1024""")
    for i in range(8): g(f"v_mov_b32 v{ACC+i}, v{ACC+8+i}")
    g(f"""L_p3_k2:
          s_waitcnt vmcnt(0) lgkmcnt(0)
          s_barrier
          ds_read_b128 v[48:51], v5
          ds_read_b128 v[52:55], v5 offset:1024""")
    unpack(g, 56, XP, 4)
    for i in range(4):
        r = 100 + 2 * i
        g(f"v_lshlrev_b32 v{64+2*i}, 16, v{r}\nv_and_b32 v{65+2*i}, 0xffff0000, v{r}")
    g("s_waitcnt lgkmcnt(0)")
    for i in range(8): g(f"v_add_f32 v{ACC+i}, v{ACC+i}, v{48+i}")
    for i in range(8): g(f"v_fma_f32 v{ACC+i}, v{ACC+i}, v{64+i}, v{56+i}")
    for i in range(4): g(f"v_cvt_pk_bf16_f32 v{XP+i}, v{ACC+2*i}, v{ACC+2*i+1}")
    g(f"""buffer_store_dwordx4 {vr(XP,4)}, {V_L16}, {WS}, s42 offen sc1
          s_waitcnt vmcnt(0)
          s_barrier""")
    stamp(g, opt, 12)

def group_handoff(g, F, lab):
    g(f"""s_cmp_lg_u32 {S_W}, 0
          s_cbranch_scc1 {lab}
          s_lshl_b32 s33, {S_G}, 5
          s_add_u32 s34, s33, {F}
          s_lshl_b32 s32, {S_J}, 2
          s_add_u32 s32, s32, s34""")
    set_flag(g, "s32")
    g(f"v_lshlrev_b32 v6, 2, {V_LANE}")
    poll_flags(g, "v6", "s34", "0xff")
    g(f"{lab}:")

L_X1, L_ST4 = 0, 65536
def phase4(g, opt):
    group_handoff(g, FX, "L_p4_a")
    g(f"""s_and_b32 s32, {S_W}, 1
          s_lshr_b32 s33, {S_W}, 1
          s_lshl_b32 s39, s32, 5
          s_add_u32 s39, s39, s33
          s_lshl_b32 s39, s39, 10
          s_lshl_b32 s38, s59, 15
          s_add_u32 s38, s38, {X1F}
          s_lshl_b32 s45, {S_J}, 2
          s_add_u32 s45, s45, s33
          ; W2 prefetch: nb = 2j + jn, kq = (w&1) + 2(w>>2), slot q <-> ks = 28kq + (q + rot) % 28
          s_lshl_b32 s33, s37, 1
          s_add_u32 s61, s32, s33            ; kq
          s_lshr_b32 s33, s60, 1             ; nb
          s_mul_i32 s43, s33, {112*1024}
          s_mul_i32 s33, s61, {28*1024}
          s_add_u32 s43, s43, s33
          s_add_u32 s43, s43, {W2F}
          s_mul_i32 s62, {S_J}, 7
          s_lshr_b32 s62, s62, 1             ; rot
          s_lshl_b32 s44, s62, 10
          ; u, b, h1 addresses
          s_mul_i32 s32, {S_J}, 7
          s_add_u32 s32, s32, {S_W}
          s_lshl_b32 s46, s32, 7
          s_add_u32 s46, s46, {UV}
          s_add_u32 s47, s46, {BV - UV}
          s_mul_i32 s42, {S_G}, {2*112*1024}
          s_lshl_b32 s32, s32, 11
          s_add_u32 s42, s42, s32
          s_add_u32 s42, s42, {H1F}
          s_add_u32 s63, s42, {112*1024}
          s_mov_b32 s48, {f32(-LOG2E)}
          s_mov_b32 s49, s48
          s_barrier""")
    stamp(g, opt, 13)
    for r in range(8):
        g(f"""s_and_b32 s45, s45, 31
              s_lshl_b32 s32, s45, 10
              s_add_u32 s32, s32, s38
              s_add_u32 m0, s39, {L_X1 + r*4096}
              s_add_u32 s45, s45, 4
              buffer_load_dwordx4 {V_L16}, {WS}, s32 offen sc1 lds""")
    def w2load(q):
        g(f"""s_add_u32 s32, s43, s44
              buffer_load_dwordx4 {ar(4*q,4)}, {V_L16}, {WS}, s32 offen sc1
              s_add_u32 s44, s44, 1024
              s_cmp_eq_u32 s44, {28*1024}
              s_cselect_b32 s44, 0, s44""")
    chunks = ((0, 4, 7), (4, 8, 6), (8, 16, 4), (16, 32, 0))
    g(f"""s_cmp_eq_u32 {S_W}, 7
          s_cbranch_scc1 L_p4_stat""")
    U, B, A0, A1 = 64, 80, 32, 48
    for jj in range(4):
        g(f"buffer_load_dwordx4 {vr(U+4*jj,4)}, v7, {WS}, s46 offen offset:{jj*32} sc1")
        g(f"buffer_load_dwordx4 {vr(B+4*jj,4)}, v7, {WS}, s47 offen offset:{jj*32} sc1")
    later = 8
    BUF = [12, 20]
    def rd(q):
        b = BUF[q & 1]
        g(f"ds_read_b128 {vr(b,4)}, {V_L16} offset:{q*1024}\nds_read_b128 {vr(b+4,4)}, {V_L16} offset:{32768+q*1024}")
    for (q0, q1, out) in chunks:
        g(f"s_waitcnt vmcnt({out + later})\ns_barrier")
        rd(q0)
        for q in range(q0, q1):
            if q + 1 < q1:
                rd(q + 1); g("s_waitcnt lgkmcnt(2)")
            else: g("s_waitcnt lgkmcnt(0)")
            b = BUF[q & 1]
            g(f"v_mfma_f32_32x32x16_bf16 {vr(A0,16)}, {ar(4*q,4)}, {vr(b,4)}, {'0' if q == 0 else vr(A0,16)}")
            g(f"v_mfma_f32_32x32x16_bf16 {vr(A1,16)}, {ar(4*q,4)}, {vr(b+4,4)}, {'0' if q == 0 else vr(A1,16)}")
            if q < 28:
                w2load(q); later += 1
    stamp(g, opt, 14)
    g(f"""v_and_b32 v10, 31, {V_LANE}
          v_lshlrev_b32 v6, 3, v10
          v_add_u32 v6, {L_ST4}, v6
          s_mov_b32 s40, 1.0
          s_mov_b32 s41, 1.0
          s_nop 0
          s_barrier
          ds_read_b64 v[8:9], v6
          ds_read_b64 v[10:11], v6 offset:256
          s_waitcnt vmcnt(28) lgkmcnt(0)""")
    for i, (A, st, so) in enumerate(((A0, 8, "s42"), (A1, 10, "s63"))):
        for p in range(8):
            a = vr(A + 2 * p, 2); t = vr(100 + 4 * (p & 1), 2); e = 102 + 4 * (p & 1)
            g(f"""v_pk_fma_f32 {t}, {vr(U+2*p,2)}, {vr(st,2)}, {vr(B+2*p,2)} op_sel_hi:[1,0,1]
                  v_pk_fma_f32 {a}, {a}, {vr(st,2)}, {t} op_sel:[0,1,0] op_sel_hi:[1,1,1]
                  v_pk_mul_f32 {vr(e,2)}, {a}, s[48:49]
                  v_exp_f32 v{e}, v{e}
                  v_exp_f32 v{e+1}, v{e+1}
                  s_nop 0
                  v_pk_add_f32 {vr(e,2)}, {vr(e,2)}, s[40:41]
                  v_rcp_f32 v{e}, v{e}
                  v_rcp_f32 v{e+1}, v{e+1}
                  s_nop 0
                  v_pk_mul_f32 {a}, {a}, {vr(e,2)}
                  v_cvt_pk_bf16_f32 v{12+8*i+p}, v{A+2*p}, v{A+2*p+1}""")
            if p & 3 == 3:
                g(f"buffer_store_dwordx4 {vr(12+8*i+p-3,4)}, {V_L16}, {WS}, {so} offen offset:{(p>>2)*1024} sc1")
    g("s_branch L_p4_end")
    g(f"""L_p4_stat:
          s_mov_b32 s40, 0x3f803f80""")
    for i in range(4): g(f"v_mov_b32 v{32+i}, 0")
    later = 0
    for (q0, q1, out) in chunks:
        g(f"s_waitcnt vmcnt({out + later})\ns_barrier")
        rd(q0)
        for q in range(q0, q1):
            if q + 1 < q1:
                rd(q + 1); g("s_waitcnt lgkmcnt(2)")
            else: g("s_waitcnt lgkmcnt(0)")
            b = BUF[q & 1]
            for k in range(4):
                g(f"""v_dot2_f32_bf16 v32, v{b+k}, s40, v32
                      v_dot2_f32_bf16 v33, v{b+k}, v{b+k}, v33
                      v_dot2_f32_bf16 v34, v{b+4+k}, s40, v34
                      v_dot2_f32_bf16 v35, v{b+4+k}, v{b+4+k}, v35""")
            if q < 28:
                w2load(q); later += 1
    g(f"""v_and_b32 v10, 31, {V_LANE}
          v_lshlrev_b32 v6, 3, v10
          v_add_u32 v6, {L_ST4}, v6""")
    for i in range(2):
        s, q = 32 + 2 * i, 33 + 2 * i
        g(f"""s_nop 1
              v_permlane32_swap_b32 v{s}, v{q}
              v_add_f32 v{s}, v{s}, v{q}
              v_mov_b32 v{q}, v{s}
              s_nop 1
              v_permlane32_swap_b32 v{s}, v{q}
              v_mul_f32 v{s}, {f32(1/512)}, v{s}
              v_mul_f32 v{q}, {f32(1/512)}, v{q}
              v_fma_f32 v{q}, -v{s}, v{s}, v{q}
              v_max_f32 v{q}, 0, v{q}
              v_add_f32 v{q}, {f32(1e-5)}, v{q}
              v_rsq_f32 v{q}, v{q}
              s_nop 0
              v_mul_f32 v{s}, -v{s}, v{q}
              ds_write_b64 v6, {vr(s,2)} offset:{i*256}""")
    g(f"""s_waitcnt lgkmcnt(0)
          s_barrier
          L_p4_end:
          s_waitcnt vmcnt(0)
          s_barrier""")
    stamp(g, opt, 15)

def phase5(g, opt):
    group_handoff(g, FG, "L_p5_a")
    g(f"""s_lshr_b32 s33, {S_W}, 1
          s_mul_i32 s38, s59, {112*1024}
          s_mul_i32 s33, s33, {28*1024}
          s_add_u32 s38, s38, s33
          s_add_u32 s38, s38, {H1F}
          s_lshl_b32 s44, s62, 10
          s_lshl_b32 s39, {S_W}, 10
          s_lshl_b32 s32, s61, 11
          v_add_u32 v4, s32, {V_L16}
          v_add_u32 v5, 65536, v4
          s_lshl_b32 s32, s60, 6
          s_add_u32 s46, s32, {MODG + 2560*4}
          s_barrier""")
    stamp(g, opt, 16)
    g(f"""buffer_load_dwordx4 v[100:103], v7, {WS}, s46 offen sc1
          buffer_load_dwordx4 v[104:107], v7, {WS}, s46 offen offset:32 sc1""")
    RING = 16
    def dma(r):
        g(f"""s_add_u32 s32, s38, s44
              s_add_u32 m0, s39, {(r % RING)*8192}
              s_add_u32 s44, s44, 1024
              buffer_load_dwordx4 {V_L16}, {WS}, s32 offen sc1 lds
              s_cmp_eq_u32 s44, {28*1024}
              s_cselect_b32 s44, 0, s44""")
    for r in range(RING): dma(r)
    issued = RING
    A0, A1 = 32, 48
    sizes = [2, 2, 4, 4, 4, 4, 4, 4]
    q0 = 0; prev = 0
    for n in sizes:
        q1 = q0 + n
        g(f"s_waitcnt vmcnt({issued - q1})\ns_barrier")
        for q in range(q0, q1):
            b = 64 + 8 * (q - q0)
            va, off = ("v4", (q % RING) * 8192) if (q % RING) < 8 else ("v5", (q % RING - 8) * 8192)
            g(f"ds_read_b128 {vr(b,4)}, {va} offset:{off}\nds_read_b128 {vr(b+4,4)}, {va} offset:{off+1024}")
        for r in range(prev, q0):
            if issued < 28:
                dma(issued); issued += 1
        prev = q0
        for q in range(q0, q1):
            b = 64 + 8 * (q - q0)
            g(f"s_waitcnt lgkmcnt({2*(q1-1-q)})")
            g(f"v_mfma_f32_32x32x16_bf16 {vr(A0,16)}, {ar(4*q,4)}, {vr(b,4)}, {'0' if q == 0 else vr(A0,16)}")
            g(f"v_mfma_f32_32x32x16_bf16 {vr(A1,16)}, {ar(4*q,4)}, {vr(b+4,4)}, {'0' if q == 0 else vr(A1,16)}")
        q0 = q1
    assert issued == 28
    stamp(g, opt, 17)
    g(f"""s_and_b32 s32, {S_W}, 2
          s_lshl_b32 s32, s32, 14
          s_lshl_b32 s33, s61, 11
          s_add_u32 s33, s33, s32
          v_add_u32 v4, s33, {V_L16}
          s_lshl_b32 s33, s61, 13
          s_add_u32 s33, s33, s32
          v_add_u32 v5, s33, {V_L16}
          s_lshl_b32 s46, s59, 15
          s_lshl_b32 s32, s60, 5
          s_add_u32 s46, s46, s32
          v_and_b32 v10, 31, {V_LANE}
          v_lshlrev_b32 v8, 10, v10
          v_add_u32 v8, v8, v7
          s_barrier""")
    for pc in range(4):
        A = (A0, A1)[pc & 1] + 8 * (pc >> 1)
        g(f"ds_write_b128 v4, {vr(A,4)} offset:{pc*8192}\nds_write_b128 v4, {vr(A+4,4)} offset:{pc*8192+1024}")
    unpack(g, 12, XP, 4)
    for i in range(4):
        r = 100 + 2 * i
        g(f"v_lshlrev_b32 v{20+2*i}, 16, v{r}\nv_and_b32 v{21+2*i}, 0xffff0000, v{r}")
    g("s_waitcnt lgkmcnt(0)\ns_barrier")
    for k in range(4):
        g(f"ds_read_b128 {vr(64+8*k,4)}, v5 offset:{k*2048}\nds_read_b128 {vr(68+8*k,4)}, v5 offset:{k*2048+1024}")
    g("s_waitcnt lgkmcnt(4)")
    for i in range(8): g(f"v_add_f32 v{64+i}, v{64+i}, v{72+i}")
    g("s_waitcnt lgkmcnt(0)")
    for i in range(8): g(f"v_add_f32 v{80+i}, v{80+i}, v{88+i}")
    for i in range(8): g(f"v_add_f32 v{64+i}, v{64+i}, v{80+i}")
    for i in range(8): g(f"v_fma_f32 v{64+i}, v{64+i}, v{20+i}, v{12+i}")
    for i in range(4): g(f"v_cvt_pk_bf16_f32 v{XP+i}, v{64+2*i}, v{65+2*i}")
    g(f"""s_nop 1
          v_permlane32_swap_b32 v{XP}, v{XP+2}
          v_permlane32_swap_b32 v{XP+1}, v{XP+3}
          buffer_store_dwordx4 {vr(XP,4)}, v8, {OS}, s46 offen""")
    stamp(g, opt, 18)
```

```python
import sys, os
NAME = "adaLN_cond__softmax_full_mha__dense_activation_silu__prompt"

WS_E    = 0x0
FH, FQ, FW, FO, FX, FG = 0x1400, 0x1800, 0x1C00, 0x2000, 0x2400, 0x2800
MODG    = 0x4000
UV, BV  = 0x8000, 0xA000
TS      = 0x10000
HF, QF, KF, VF, OF, X1F = 0x100000, 0x300000, 0x500000, 0x700000, 0x900000, 0xB00000
WOF, W1F, W2F, H1F = 0xD00000, 0xD80000, 0xF40000, 0x1100000
WS_SIZE = 0x10000000
L_WQ = 0
L_JOB = 98304
L_SCR = 131072
L_SV, L_RED, L_STAT, L_UB, L_MA = L_SCR, L_SCR + 1024, L_SCR + 2048, L_SCR + 3072, L_SCR + 4096
L_K, L_V, VSTR = 0, 65536, 1040
L_EX = L_V + 64 * VSTR
LDS_BYTES = 160 * 1024
LOG2E = 1.4426950408889634
BIG = 0x7FF00000

import struct
def f32(x): return "0x%08x" % struct.unpack("<I", struct.pack("<f", x))[0]

class G:
    def __init__(s): s.l = []; s.n = 0
    def __call__(s, t):
        for x in t.strip().split("\n"):
            x = x.strip()
            if x: s.l.append(x if x.endswith(":") else "    " + x)
    def lab(s, base): s.n += 1; return f"L_{base}_{s.n}"
def vr(i, n): return f"v[{i}:{i+n-1}]" if n > 1 else f"v{i}"
def ar(i, n): return f"a[{i}:{i+n-1}]" if n > 1 else f"a{i}"

S_ID, S_W, S_TAG, S_XCD, S_IDX = "s2", "s3", "s4", "s5", "s6"
WS, XS, WQ, JS, CS, OS = "s[8:11]", "s[12:15]", "s[16:19]", "s[20:23]", "s[24:27]", "s[28:31]"
S_JT, S_RS, S_S0, S_DST = "s50", "s51", "s52", "s53"
S_RB, S_CT, S_G, S_J = "s54", "s55", "s56", "s57"
V_LANE, V_L16 = "v1", "v2"
POLL_LIMIT = 100000

def stamp(g, opt, k):
    if opt.get("ts"):
        g(f"""{'s_memrealtime' if opt['ts'] == 1 else 's_memtime'} s[34:35]
              s_waitcnt lgkmcnt(0)
              v_writelane_b32 v127, s34, {k}""")

def poll_flags(g, vaddr, soff, nlanes_mask):
    lp, done = g.lab("poll"), g.lab("got")
    g(f"""s_mov_b32 exec_lo, {nlanes_mask}
          s_mov_b32 exec_hi, 0
          s_mov_b32 s33, 0
          {lp}:
          buffer_load_dword v10, {vaddr}, {WS}, {soff} offen sc1
          s_waitcnt vmcnt(0)
          v_cmp_ne_u32 vcc, {S_TAG}, v10
          s_cbranch_vccz {done}
          s_add_u32 s33, s33, 1
          s_cmp_lt_u32 s33, {POLL_LIMIT}
          s_cbranch_scc1 {lp}
          {done}:
          s_mov_b64 exec, -1""")

def set_flag(g, soff):
    g(f"""v_mov_b32 v10, {S_TAG}
          v_mov_b32 v11, 0
          s_mov_b64 exec, 1
          buffer_store_dword v10, v11, {WS}, {soff} offen sc1
          s_mov_b64 exec, -1""")

def finish(g, opt):
    if opt.get("ts"):
        g(f"""s_lshl_b32 s32, {S_ID}, 3
              s_add_u32 s32, s32, {S_W}
              s_lshl_b32 s32, s32, 8
              s_add_u32 s32, s32, {TS}
              v_lshlrev_b32 v10, 2, {V_LANE}
              buffer_store_dword v127, v10, {WS}, s32 offen""")
    g("s_waitcnt vmcnt(0)\ns_endpgm")

def prologue(g, opt):
    g(f"""s_cmp_ge_u32 {S_ID}, 256
          s_cbranch_scc1 L_end
          s_load_dwordx16 s[64:79], s[0:1], 0
          s_load_dwordx4 s[80:83], s[0:1], 64
          s_load_dwordx2 s[84:85], s[0:1], 80
          v_lshrrev_b32 v3, 6, v0
          v_and_b32 {V_LANE}, 63, v0
          v_readfirstlane_b32 {S_W}, v3
          v_lshlrev_b32 {V_L16}, 4, {V_LANE}
          s_and_b32 {S_XCD}, {S_ID}, 7
          s_lshr_b32 {S_IDX}, {S_ID}, 3
          s_lshr_b32 s32, {S_XCD}, 1
          s_lshl_b32 s32, s32, 2
          s_and_b32 s33, {S_IDX}, 3
          s_add_u32 {S_RB}, s32, s33
          s_and_b32 s32, {S_XCD}, 1
          s_lshl_b32 s32, s32, 3
          s_lshr_b32 s33, {S_IDX}, 2
          s_add_u32 {S_CT}, s32, s33
          s_lshl_b32 s32, {S_XCD}, 2
          s_lshr_b32 s33, {S_IDX}, 3
          s_add_u32 {S_G}, s32, s33
          s_and_b32 {S_J}, {S_IDX}, 7
          s_mov_b32 s11, 0x20000
          s_mov_b32 s15, 0x20000
          s_mov_b32 s19, 0x20000
          s_mov_b32 s23, 0x20000
          s_mov_b32 s27, 0x20000
          s_mov_b32 s31, 0x20000
          s_mov_b32 s10, {WS_SIZE}
          s_mov_b32 s14, 2097152
          s_mov_b32 s18, 1572864
          s_mov_b32 s26, 1024
          s_mov_b32 s30, 2097152""")
    if opt.get("ts"): g("v_mov_b32 v127, 0")
    g(f"""s_waitcnt lgkmcnt(0)
          s_load_dword {S_TAG}, s[84:85], {WS_E}
          s_mov_b32 s8, s84
          s_mov_b32 s9, s85
          s_mov_b32 s12, s64
          s_mov_b32 s13, s65
          s_mov_b32 s16, s66
          s_mov_b32 s17, s67
          s_mov_b32 s24, s76
          s_mov_b32 s25, s77
          s_mov_b32 s28, s80
          s_mov_b32 s29, s81""")
    g(f"""s_cmp_lt_u32 {S_ID}, 96
          s_cbranch_scc0 L_j1
          s_mov_b32 {S_JT}, 0
          s_mov_b32 s20, s78
          s_mov_b32 s21, s79
          s_mov_b32 s22, 3145728
          s_mov_b32 {S_RS}, 6144
          s_lshl_b32 {S_S0}, {S_ID}, 6
          s_mov_b32 {S_DST}, 0
          s_branch L_jdone
          L_j1:
          s_cmp_lt_u32 {S_ID}, 152
          s_cbranch_scc0 L_j2
          s_mov_b32 {S_JT}, 1
          s_mov_b32 s20, s72
          s_mov_b32 s21, s73
          s_mov_b32 s22, 1835008
          s_mov_b32 {S_RS}, 3584
          s_sub_u32 s32, {S_ID}, 96
          s_lshl_b32 {S_S0}, s32, 6
          s_lshl_b32 {S_DST}, s32, 15
          s_add_u32 {S_DST}, {S_DST}, {W1F}
          s_branch L_jdone
          L_j2:
          s_cmp_lt_u32 {S_ID}, 216
          s_cbranch_scc0 L_j3
          s_mov_b32 {S_JT}, 2
          s_mov_b32 s20, s74
          s_mov_b32 s21, s75
          s_mov_b32 s22, 1835008
          s_mov_b32 {S_RS}, 1024
          s_sub_u32 s32, {S_ID}, 152
          s_and_b32 s33, s32, 3
          s_lshr_b32 s32, s32, 2
          s_mul_i32 {S_S0}, s33, {448*1024}
          s_lshl_b32 s34, s32, 6
          s_add_u32 {S_S0}, {S_S0}, s34
          s_mul_i32 {S_DST}, s32, {112*1024}
          s_mul_i32 s34, s33, {28*1024}
          s_add_u32 {S_DST}, {S_DST}, s34
          s_add_u32 {S_DST}, {S_DST}, {W2F}
          s_branch L_jdone
          L_j3:
          s_mov_b32 s20, s68
          s_mov_b32 s21, s69
          s_mov_b32 {S_RS}, 1024
          s_sub_u32 s32, {S_ID}, 216
          s_lshl_b32 {S_S0}, s32, 6
          s_lshl_b32 {S_DST}, s32, 15
          s_add_u32 {S_DST}, {S_DST}, {WOF}
          s_cmp_lt_u32 {S_ID}, 232
          s_cselect_b32 {S_JT}, 3, 4
          s_cselect_b32 s22, 524288, 0
          L_jdone:""")
    stamp(g, opt, 0)

def job_dma(g):
    g(f"""v_lshrrev_b32 v4, 2, {V_LANE}
          v_mul_lo_u32 v4, v4, {S_RS}
          v_and_b32 v5, 3, {V_LANE}
          v_lshl_add_u32 v4, v5, 4, v4
          s_lshl_b32 s37, {S_RS}, 4
          s_lshl_b32 s38, s36, 3
          s_mul_i32 s38, s38, s37
          s_add_u32 s38, s38, {S_S0}
          s_lshl_b32 s39, s36, 13
          s_add_u32 s39, s39, {L_JOB}""")
    for kk in range(8):
        g(f"""s_mov_b32 m0, s39
              s_add_u32 s39, s39, 1024
              buffer_load_dwordx4 v4, {JS}, s38 offen lds
              s_add_u32 s38, s38, s37""")

def tr_addr(g, vd, acc_order):
    sh = 8 if acc_order else 9
    g(f"""v_lshrrev_b32 v10, 5, {V_LANE}
          v_lshlrev_b32 {vd}, {sh}, v10
          v_bfe_u32 v10, {V_LANE}, 2, 2
          v_lshl_add_u32 {vd}, v10, 6, {vd}
          v_bfe_u32 v10, {V_LANE}, 4, 1
          v_lshl_add_u32 {vd}, v10, 5, {vd}
          v_and_b32 v10, 3, {V_LANE}
          v_lshl_add_u32 {vd}, v10, 3, {vd}""")
    return 512 if acc_order else 256

def unpack(g, dst, src, n):
    for i in range(n):
        g(f"v_lshlrev_b32 v{dst+2*i}, 16, v{src+i}\nv_and_b32 v{dst+2*i+1}, 0xffff0000, v{src+i}")

def phase0(g, opt):
    g(f"""s_cmp_ge_u32 {S_W}, 4
          s_cbranch_scc1 L_hi0""")
    XR = 16
    g(f"""; T0: c + job strip first
          s_cmp_lg_u32 {S_JT}, 0
          s_cbranch_scc1 L_lo_nojob
          v_lshlrev_b32 v6, 2, v0
          buffer_load_dword v12, v6, {CS}, 0 offen
          s_mov_b32 s36, {S_W}""")
    job_dma(g)
    g(f"""L_lo_nojob:
          v_and_b32 v7, 7, {V_LANE}
          v_lshrrev_b32 v8, 3, {V_LANE}
          v_lshlrev_b32 v9, 10, v7
          v_lshl_add_u32 v9, v8, 4, v9
          s_lshl_b32 s32, {S_ID}, 13
          s_lshl_b32 s33, {S_W}, 8
          s_add_u32 s32, s32, s33
          buffer_load_dwordx4 {vr(XR,4)}, v9, {XS}, s32 offen
          buffer_load_dwordx4 {vr(XR+4,4)}, v9, {XS}, s32 offen offset:128
          s_cmp_lg_u32 {S_JT}, 0
          s_cbranch_scc1 L_lo_ln""")
    g(f"""s_waitcnt vmcnt(10)
          v_lshlrev_b32 v13, 16, v12
          v_and_b32 v14, 0xffff0000, v12
          v_mul_f32 v24, {f32(-LOG2E)}, v13
          v_mul_f32 v25, {f32(-LOG2E)}, v14
          v_exp_f32 v24, v24
          v_exp_f32 v25, v25
          s_nop 0
          v_add_f32 v24, 1.0, v24
          v_add_f32 v25, 1.0, v25
          v_rcp_f32 v24, v24
          v_rcp_f32 v25, v25
          s_nop 0
          v_mul_f32 v13, v13, v24
          v_mul_f32 v14, v14, v25
          v_cvt_pk_bf16_f32 v13, v13, v14
          v_add_u32 v6, {L_SV}, v6
          ds_write_b32 v6, v13
          v_lshrrev_b32 v10, 5, {V_LANE}
          v_lshlrev_b32 v6, 4, v10
          s_lshl_b32 s32, {S_W}, 8
          s_add_u32 s32, s32, {L_SV}
          v_add_u32 v6, s32, v6
          s_waitcnt lgkmcnt(0)""")
    for kk in range(8):
        g(f"ds_read_b128 {vr(32+4*kk,4)}, v6 offset:{kk*32}")
    o2 = tr_addr(g, "v5", False)
    g(f"""s_lshl_b32 s32, {S_W}, 13
          s_add_u32 s32, s32, {L_JOB}
          v_add_u32 v5, s32, v5
          s_waitcnt vmcnt(2) lgkmcnt(0)""")
    for kk in range(8):
        g(f"""ds_read_b64_tr_b16 {vr(64+4*kk,2)}, v5 offset:{kk*1024}
              ds_read_b64_tr_b16 {vr(66+4*kk,2)}, v5 offset:{kk*1024+o2}""")
        if kk == 3: g("s_waitcnt lgkmcnt(0)")
    for kk in range(8):
        if kk == 4: g("s_waitcnt lgkmcnt(0)")
        g(f"v_mfma_f32_32x32x16_bf16 {vr(96,16)}, {vr(32+4*kk,4)}, {vr(64+4*kk,4)}, {'0' if kk == 0 else vr(96,16)}")
    g(f"""v_and_b32 v5, 31, {V_LANE}
          v_lshlrev_b32 v5, 2, v5
          s_lshl_b32 s32, {S_W}, 7
          s_add_u32 s32, s32, {L_RED}
          v_add_u32 v6, s32, v5
          s_nop 7
          ds_write_b32 v6, v96""")
    g(f"""L_lo_ln:
          s_waitcnt vmcnt(0)
          s_mov_b32 s32, 0x3f803f80
          v_mov_b32 v24, 0
          v_mov_b32 v25, 0""")
    for i in range(8):
        g(f"v_dot2_f32_bf16 v24, v{XR+i}, s32, v24\nv_dot2_f32_bf16 v25, v{XR+i}, v{XR+i}, v25")
    g(f"""s_nop 2
          v_add_f32_dpp v24, v24, v24 row_ror:8 row_mask:0xf bank_mask:0xf
          v_add_f32_dpp v25, v25, v25 row_ror:8 row_mask:0xf bank_mask:0xf
          s_nop 1
          v_permlane16_swap_b32 v24, v25
          v_add_f32 v24, v24, v25
          v_mov_b32 v25, v24
          s_nop 1
          v_permlane32_swap_b32 v24, v25
          v_add_f32 v24, v24, v25
          ; [r8][s|q][w] floats
          v_lshlrev_b32 v6, 5, v7
          v_bfe_u32 v10, {V_LANE}, 4, 1
          v_lshl_add_u32 v6, v10, 4, v6
          s_lshl_b32 s32, {S_W}, 2
          s_add_u32 s32, s32, {L_STAT}
          v_add_u32 v6, s32, v6
          ds_write_b32 v6, v24
          s_waitcnt lgkmcnt(0)
          s_add_u32 {S_TAG}, {S_TAG}, 1
          s_barrier""")
    stamp(g, opt, 1)
    g(f"""s_cmp_lg_u32 {S_JT}, 0
          s_cbranch_scc1 L_lo_nopub
          s_cmp_lg_u32 {S_W}, 0
          s_cbranch_scc1 L_lo_nopub
          v_add_u32 v5, {L_RED}, v5
          ds_read_b32 v26, v5
          ds_read_b32 v27, v5 offset:128
          ds_read_b32 v28, v5 offset:256
          ds_read_b32 v29, v5 offset:384
          s_lshr_b32 s32, {S_ID}, 4
          s_cmp_eq_u32 s32, 1
          s_cselect_b32 s33, 1.0, 0
          s_cmp_eq_u32 s32, 4
          s_cselect_b32 s33, 1.0, s33
          s_waitcnt lgkmcnt(0)
          v_add_f32 v26, v26, v27
          v_add_f32 v28, v28, v29
          v_add_f32 v26, v26, v28
          v_cvt_pk_bf16_f32 v26, v26, v26
          v_and_b32 v26, 0xffff0000, v26
          v_add_f32 v26, s33, v26
          s_nop 1
          v_mov_b32_dpp v27, v26 quad_perm:[1,0,3,2] row_mask:0xf bank_mask:0xf
          v_cvt_pk_bf16_f32 v26, v26, v27
          v_mov_b32 v27, {S_TAG}
          v_lshlrev_b32 v5, 2, {V_LANE}
          s_lshl_b32 s32, {S_ID}, 7
          s_add_u32 s32, s32, {MODG}
          s_mov_b64 exec, 0x55555555
          buffer_store_dwordx2 v[26:27], v5, {WS}, s32 offen sc1
          s_mov_b64 exec, -1
          L_lo_nopub:""")
    XN = 32
    g(f"""v_lshlrev_b32 v6, 5, v7
          v_add_u32 v6, {L_STAT}, v6
          ds_read_b128 v[24:27], v6
          ds_read_b128 v[28:31], v6 offset:16""")
    unpack(g, XN, XR, 8)
    g(f"""s_waitcnt lgkmcnt(0)
          v_add_f32 v24, v24, v25
          v_add_f32 v26, v26, v27
          v_add_f32 v28, v28, v29
          v_add_f32 v30, v30, v31
          v_add_f32 v24, v24, v26
          v_add_f32 v28, v28, v30
          v_mul_f32 v24, {f32(1/512)}, v24
          v_mul_f32 v28, {f32(1/512)}, v28
          v_fma_f32 v28, -v24, v24, v28
          v_max_f32 v28, 0, v28
          v_add_f32 v28, {f32(1e-5)}, v28
          v_rsq_f32 v28, v28
          s_nop 0
          v_mul_f32 v24, v24, v28""")
    for i in range(16):
        g(f"v_fma_f32 v{XN+i}, v{XN+i}, v28, -v24")
    GA = 48
    lp, done = g.lab("pollm"), g.lab("gotm")
    g(f"""v_lshlrev_b32 v6, 5, v8
          s_lshl_b32 s32, {S_W}, 9
          s_add_u32 s32, s32, {MODG}
          s_mov_b32 s33, 0
          {lp}:""")
    offs = [2048, 2048 + 16, 2048 + 256, 2048 + 272, 0, 16, 256, 272]
    for i, o in enumerate(offs):
        g(f"buffer_load_dwordx4 {vr(GA+4*i,4)}, v6, {WS}, s32 offen offset:{o} sc1")
    g("s_waitcnt vmcnt(0)")
    tags = [GA + 4 * i + k for i in range(8) for k in (1, 3)]
    g(f"v_min_u32 v10, v{tags[0]}, v{tags[1]}\nv_max_u32 v11, v{tags[0]}, v{tags[1]}")
    for i in range(2, 16, 2):
        g(f"v_min3_u32 v10, v10, v{tags[i]}, v{tags[i+1]}\nv_max3_u32 v11, v11, v{tags[i]}, v{tags[i+1]}")
    g(f"""v_cmp_ne_u32 vcc, {S_TAG}, v10
          v_cmp_ne_u32 s[40:41], {S_TAG}, v11
          s_or_b64 vcc, vcc, s[40:41]
          s_cbranch_vccz {done}
          s_add_u32 s33, s33, 1
          s_cmp_lt_u32 s33, {POLL_LIMIT}
          s_cbranch_scc1 {lp}
          {done}:""")
    stamp(g, opt, 2)
    for i in range(8):
        ra = GA + 4 * (i >> 1) + 2 * (i & 1); rs = ra + 16
        g(f"""v_lshlrev_b32 v24, 16, v{ra}
              v_and_b32 v25, 0xffff0000, v{ra}
              v_lshlrev_b32 v26, 16, v{rs}
              v_and_b32 v27, 0xffff0000, v{rs}
              v_fma_f32 v24, v{XN+2*i}, v24, v26
              v_fma_f32 v25, v{XN+2*i+1}, v25, v27
              v_cvt_pk_bf16_f32 v{XR+i}, v24, v25""")
    g(f"""v_lshlrev_b32 v6, 9, v8
          v_lshl_add_u32 v6, v7, 4, v6
          s_lshr_b32 s32, {S_ID}, 2
          s_lshl_b32 s32, s32, 15
          s_lshl_b32 s33, {S_W}, 13
          s_add_u32 s32, s32, s33
          s_and_b32 s33, {S_ID}, 3
          s_lshl_b32 s33, s33, 7
          s_add_u32 s32, s32, s33
          s_add_u32 s32, s32, {HF}
          s_add_u32 s33, s32, 4096
          buffer_store_dwordx4 {vr(XR,4)}, v6, {WS}, s32 offen sc1
          buffer_store_dwordx4 {vr(XR+4,4)}, v6, {WS}, s33 offen sc1
          s_waitcnt vmcnt(0)
          s_barrier""")
    stamp(g, opt, 3)
    g(f"""s_cmp_lg_u32 {S_W}, 0
          s_cbranch_scc1 L_lo_b3
          s_lshl_b32 s32, {S_ID}, 2
          s_add_u32 s32, s32, {FH}""")
    set_flag(g, "s32")
    g(f"""v_lshlrev_b32 v6, 2, {V_LANE}
          s_lshl_b32 s32, {S_RB}, 6
          s_add_u32 s32, s32, {FH}""")
    poll_flags(g, "v6", "s32", "0xffff")
    g("L_lo_b3:\ns_barrier")
    stamp(g, opt, 4)
    if opt.get("stop") == 0:
        g("s_barrier"); finish(g, opt)
    else:
        phase1_gemm(g, opt)
        g("s_branch L_p1_end")
    g(f"""L_hi0:
          s_sub_u32 s36, {S_W}, 4
          s_cmp_eq_u32 {S_JT}, 0
          s_cbranch_scc1 L_hi_nojob""")
    job_dma(g)
    g(f"""L_hi_nojob:
          v_lshrrev_b32 v4, 2, {V_LANE}
          v_mul_u32_u24 v4, 3072, v4
          v_and_b32 v5, 3, {V_LANE}
          v_lshl_add_u32 v4, v5, 4, v4
          s_mul_i32 s38, s36, {8*16*3072}
          s_lshl_b32 s37, {S_CT}, 6
          s_add_u32 s38, s38, s37
          s_lshl_b32 s39, s36, 13""")
    for kk in range(8):
        for s in range(3):
            g(f"""s_add_u32 m0, s39, {s*32768 + kk*1024}
                  s_add_u32 s37, s38, {kk*16*3072 + s*1024}
                  buffer_load_dwordx4 v4, {WQ}, s37 offen lds""")
    g(f"""s_waitcnt lgkmcnt(0)
          s_add_u32 {S_TAG}, {S_TAG}, 1
          s_barrier
          s_barrier
          s_waitcnt vmcnt(0)
          s_barrier""")
    hi_jobs(g, opt)
    if opt.get("stop") == 0:
        g("s_waitcnt vmcnt(0) lgkmcnt(0)\ns_barrier")
        ub_publish(g, opt)
        finish(g, opt)
    g("L_p1_end:")

def hi_jobs(g, opt):
    g(f"""s_cmp_eq_u32 {S_JT}, 0
          s_cbranch_scc1 L_hi_done
          s_cmp_eq_u32 {S_JT}, 4
          s_cbranch_scc1 L_hi_done""")
    o2 = tr_addr(g, "v5", True)
    g(f"""s_lshl_b32 s32, s36, 13
          s_add_u32 s37, s32, {S_DST}
          s_add_u32 s32, s32, {L_JOB}
          v_add_u32 v5, s32, v5""")
    for kk in range(8):
        g(f"""ds_read_b64_tr_b16 {vr(64+4*kk,2)}, v5 offset:{kk*1024}
              ds_read_b64_tr_b16 {vr(66+4*kk,2)}, v5 offset:{kk*1024+o2}""")
        if kk == 3: g("s_waitcnt lgkmcnt(0)")
    g(f"""s_cmp_eq_u32 {S_JT}, 1
          s_cbranch_scc1 L_hi_t1
          s_add_u32 s38, s37, 4096
          s_cmp_eq_u32 {S_JT}, 2
          s_cselect_b32 s32, 3, 99
          s_cmp_eq_u32 s36, s32
          s_cselect_b32 s38, {BIG}, s38
          s_waitcnt lgkmcnt(0)""")
    for kk in range(8):
        g(f"buffer_store_dwordx4 {vr(64+4*kk,4)}, {V_L16}, {WS}, {'s37' if kk < 4 else 's38'} offen offset:{(kk&3)*1024} sc1")
    g("s_branch L_hi_done\nL_hi_t1:")
    lp, done = g.lab("pollw"), g.lab("gotw")
    g(f"""v_lshlrev_b32 v6, 3, {V_LANE}
          s_lshl_b32 s32, s36, 9
          s_add_u32 s39, s32, {L_MA}
          s_add_u32 s32, s32, {MODG + 1536*4}
          s_add_u32 s38, s37, 4096
          v_mov_b32 v28, 0x3f803f80
          v_mov_b32 v29, 0x3f803f80
          v_mov_b32 v30, 0x3f803f80
          v_mov_b32 v31, 0x3f803f80
          s_mov_b32 s33, 0
          {lp}:
          buffer_load_dwordx2 v[12:13], v6, {WS}, s32 offen sc1
          buffer_load_dwordx2 v[14:15], v6, {WS}, s32 offen offset:2048 sc1
          s_waitcnt vmcnt(0)
          v_cmp_ne_u32 vcc, {S_TAG}, v13
          v_cmp_ne_u32 s[40:41], {S_TAG}, v15
          s_or_b64 vcc, vcc, s[40:41]
          s_cbranch_vccz {done}
          s_add_u32 s33, s33, 1
          s_cmp_lt_u32 s33, {POLL_LIMIT}
          s_cbranch_scc1 {lp}
          {done}:
          v_lshl_add_u32 v6, {V_LANE}, 2, s39
          ds_write_b32 v6, v12
          ds_write_b32 v6, v14 offset:256
          v_lshrrev_b32 v10, 5, {V_LANE}
          v_lshl_add_u32 v6, v10, 3, s39
          s_waitcnt lgkmcnt(0)""")
    for kk in range(8):
        g(f"""ds_read_b64 v[12:13], v6 offset:{kk*32}
              ds_read_b64 v[14:15], v6 offset:{kk*32+16}
              ds_read_b64 v[20:21], v6 offset:{256+kk*32}
              ds_read_b64 v[22:23], v6 offset:{256+kk*32+16}
              s_waitcnt lgkmcnt(0)""")
        R = 64 + 4 * kk
        g(f"v_mfma_f32_32x32x16_bf16 {vr(96,16)}, v[12:15], {vr(R,4)}, {'0' if kk == 0 else vr(96,16)}")
        for i in range(4):
            ra = 20 + i
            g(f"""v_lshlrev_b32 v8, 16, v{R+i}
                  v_and_b32 v9, 0xffff0000, v{R+i}
                  v_lshlrev_b32 v10, 16, v{ra}
                  v_and_b32 v11, 0xffff0000, v{ra}
                  v_mul_f32 v8, v8, v10
                  v_mul_f32 v9, v9, v11
                  v_cvt_pk_bf16_f32 v{32+4*kk+i}, v8, v9""")
        g(f"""s_nop 1
              v_mfma_f32_32x32x16_bf16 a[0:15], v[28:31], {vr(32+4*kk,4)}, {'0' if kk == 0 else 'a[0:15]'}
              buffer_store_dwordx4 {vr(32+4*kk,4)}, {V_L16}, {WS}, {'s37' if kk < 4 else 's38'} offen offset:{(kk&3)*1024} sc1""")
    g(f"""v_and_b32 v5, 31, {V_LANE}
          v_lshlrev_b32 v5, 2, v5
          s_lshl_b32 s32, s36, 8
          s_add_u32 s32, s32, {L_UB}
          v_add_u32 v6, s32, v5
          s_nop 7
          ds_write_b32 v6, a0
          ds_write_b32 v6, v96 offset:128
          L_hi_done:""")

def ub_publish(g, opt):
    lab = g.lab("noub")
    g(f"""s_cmp_lg_u32 {S_JT}, 1
          s_cbranch_scc1 {lab}
          s_cmp_lg_u32 {S_W}, 4
          s_cbranch_scc1 {lab}
          v_lshlrev_b32 v5, 2, {V_LANE}
          v_add_u32 v6, {L_UB}, v5
          ds_read_b32 v12, v6
          ds_read_b32 v13, v6 offset:256
          ds_read_b32 v14, v6 offset:512
          ds_read_b32 v15, v6 offset:768
          v_lshrrev_b32 v10, 5, {V_LANE}
          v_mul_u32_u24 v10, {BV - UV - 128}, v10
          v_add_u32 v5, v5, v10
          s_sub_u32 s33, {S_ID}, 96
          s_lshl_b32 s32, s33, 7
          s_add_u32 s32, s32, {UV}
          s_waitcnt lgkmcnt(0)
          v_add_f32 v12, v12, v13
          v_add_f32 v14, v14, v15
          v_add_f32 v12, v12, v14
          buffer_store_dword v12, v5, {WS}, s32 offen sc1
          s_lshl_b32 s32, s33, 2
          s_add_u32 s32, s32, {FW}
          s_waitcnt vmcnt(0)""")
    set_flag(g, "s32")
    g(f"{lab}:")

def phase1_gemm(g, opt):
    g(f"""s_lshl_b32 s32, {S_RB}, 2
          s_add_u32 s36, s32, {S_W}          ; tb
          s_lshl_b32 s32, s36, 15
          s_add_u32 s32, s32, {HF}""")
    for ks in range(32):
        if ks and ks % 4 == 0: g("s_add_u32 s32, s32, 4096")
        g(f"buffer_load_dwordx4 {ar(4*ks,4)}, {V_L16}, {WS}, s32 offen offset:{(ks&3)*1024} sc1")
    o2 = tr_addr(g, "v5", False)
    g("v_add_u32 v6, 65536, v5")
    BUF = [12, 24]
    ACC = [48, 64, 80]
    def reads(ks):
        b = BUF[ks & 1]
        for s in range(3):
            va, off = ("v5", s * 32768 + ks * 1024) if s < 2 else ("v6", ks * 1024)
            g(f"ds_read_b64_tr_b16 {vr(b+4*s,2)}, {va} offset:{off}\nds_read_b64_tr_b16 {vr(b+4*s+2,2)}, {va} offset:{off+o2}")
    reads(0)
    for ks in range(32):
        if ks + 1 < 32:
            reads(ks + 1)
            g(f"s_waitcnt vmcnt({31-ks}) lgkmcnt(6)")
        else:
            g("s_waitcnt vmcnt(0) lgkmcnt(0)")
        b = BUF[ks & 1]
        for s in range(3):
            c = '0' if ks == 0 else vr(ACC[s], 16)
            A, B = (vr(b + 4 * s, 4), ar(4 * ks, 4)) if s < 2 else (ar(4 * ks, 4), vr(b + 4 * s, 4))
            g(f"v_mfma_f32_32x32x16_bf16 {vr(ACC[s],16)}, {A}, {B}, {c}")
    stamp(g, opt, 5)
    g(f"""s_lshl_b32 s32, {S_CT}, 17
          s_lshl_b32 s33, s36, 10
          s_add_u32 s32, s32, s33
          s_add_u32 s37, s32, {QF}
          s_add_u32 s38, s32, {QF + 65536}
          s_add_u32 s39, s32, {KF}
          s_add_u32 s42, s32, {KF + 65536}
          s_add_u32 s43, s32, {VF}
          s_mov_b32 s32, {f32(0.25*LOG2E)}
          ; k slot: swap bits 2,3 of the token
          v_and_b32 v7, 0x33, {V_LANE}
          v_bfe_u32 v8, {V_LANE}, 2, 1
          v_lshl_or_b32 v7, v8, 3, v7
          v_bfe_u32 v8, {V_LANE}, 3, 1
          v_lshl_or_b32 v7, v8, 2, v7
          v_lshlrev_b32 v7, 4, v7
          v_bfe_u32 v8, {V_LANE}, 4, 1
          v_lshlrev_b32 v8, 16, v8
          v_lshrrev_b32 v9, 5, {V_LANE}
          v_lshl_add_u32 v8, v9, 8, v8
          v_and_b32 v9, 15, {V_LANE}
          v_lshl_add_u32 v8, v9, 4, v8""")
    for i in range(16): g(f"v_mul_f32 v{ACC[0]+i}, s32, v{ACC[0]+i}")
    for s in range(3):
        for i in range(8): g(f"v_cvt_pk_bf16_f32 v{12+8*s+i}, v{ACC[s]+2*i}, v{ACC[s]+2*i+1}")
        if s == 0:
            g(f"buffer_store_dwordx4 v[12:15], {V_L16}, {WS}, s37 offen sc1\nbuffer_store_dwordx4 v[16:19], {V_L16}, {WS}, s38 offen sc1")
        elif s == 1:
            g(f"buffer_store_dwordx4 v[20:23], v7, {WS}, s39 offen sc1\nbuffer_store_dwordx4 v[24:27], v7, {WS}, s42 offen sc1")
        else:
            g(f"buffer_store_dwordx4 v[28:31], v8, {WS}, s43 offen sc1\nbuffer_store_dwordx4 v[32:35], v8, {WS}, s43 offen offset:512 sc1")

def phase1_end(g, opt):
    g("s_waitcnt vmcnt(0) lgkmcnt(0)\ns_barrier")
    stamp(g, opt, 6)
    g(f"""s_cmp_lg_u32 {S_W}, 0
          s_cbranch_scc1 L_p1_nf
          s_lshl_b32 s32, {S_CT}, 4
          s_add_u32 s32, s32, {S_RB}
          s_lshl_b32 s32, s32, 2
          s_add_u32 s32, s32, {FQ}""")
    set_flag(g, "s32")
    g(f"""v_lshlrev_b32 v6, 2, {V_LANE}
          s_lshr_b32 s32, {S_G}, 1
          s_lshl_b32 s32, s32, 6
          s_add_u32 s32, s32, {FQ}""")
    poll_flags(g, "v6", "s32", "0xffff")
    g("L_p1_nf:")
    ub_publish(g, opt)


def build(opt):
    from phases2 import phase2, phase3, phase4, phase5
    opt['_tail'] = []
    g = G()
    prologue(g, opt)
    phase0(g, opt)
    stop = opt.get("stop", 9)
    if stop >= 1:
        phase1_end(g, opt)
        if stop == 1: finish(g, opt)
    for k, ph in ((2, phase2), (3, phase3), (4, phase4), (5, phase5)):
        if stop >= k:
            ph(g, opt)
            if stop == k or k == 5:
                epoch_update(g); finish(g, opt)
                break
    g("L_end:\ns_endpgm")
    for fn in opt.get("_tail", []): fn(g)
    head = open(os.path.join(os.path.dirname(os.path.abspath(__file__)), "..", "cdna_kernels", NAME + ".s.ref")).read()
    cm = [l for l in head.split("\n") if l.startswith(";") and "@launch" not in l and "Override launch" not in l and "grid=ceil" not in l]
    out = cm + [f"; @launch grid=(256,1,1) block=(512,1,1) lds={LDS_BYTES}",
        '.amdgcn_target "amdgcn-amd-amdhsa--gfx950"', ".text", f".globl {NAME}_kernel", ".p2align 8",
        f".type {NAME}_kernel,@function", f"{NAME}_kernel:"] + g.l + [
        '.section .rodata,"a"', ".p2align 6", f".amdhsa_kernel {NAME}_kernel",
        "  .amdhsa_next_free_vgpr 256", "  .amdhsa_next_free_sgpr 96", "  .amdhsa_accum_offset 128",
        "  .amdhsa_group_segment_fixed_size 0", "  .amdhsa_kernarg_size 88", "  .amdhsa_user_sgpr_count 2",
        "  .amdhsa_user_sgpr_kernarg_segment_ptr 1", "  .amdhsa_system_sgpr_workgroup_id_x 1",
        ".end_amdhsa_kernel", ""]
    return "\n".join(out)

def epoch_update(g):
    lab = g.lab("noep")
    g(f"""s_or_b32 s32, {S_ID}, {S_W}
          s_cmp_lg_u32 s32, 0
          s_cbranch_scc1 {lab}
          s_mov_b32 s32, {WS_E}""")
    set_flag(g, "s32")
    g(f"{lab}:")

if __name__ == "__main__":
    opt = {}
    outp = None
    for a in sys.argv[1:]:
        if "=" in a:
            k, v = a.split("="); opt[k] = int(v)
        else: outp = a
    asm = build(opt)
    import asmcheck
    bad = asmcheck.check(asm)
    open(outp or f"cdna_kernels/{NAME}.s", "w").write(asm)
    sys.exit(1 if bad else 0)
```

```python
import re, sys
from collections import namedtuple

REG = re.compile(r'^(-|\|)?(abs\()?(-)?([vas])(\d+|\[(\d+):(\d+)\])\)?\|?$')
TRANS = ('v_exp_f32', 'v_log_f32', 'v_rcp_f32', 'v_rsq_f32', 'v_sqrt_f32', 'v_sin_f32', 'v_cos_f32', 'v_exp_f16', 'v_rcp_f16', 'v_rcp_iflag_f32')

def regs_of(tok):
    tok = tok.strip()
    if tok in ('vcc', 'vcc_lo', 'vcc_hi'): return {'vcc'}
    if tok in ('exec', 'exec_lo', 'exec_hi'): return {'exec'}
    if tok == 'm0': return {'m0'}
    if tok == 'scc': return {'scc'}
    m = REG.match(tok)
    if not m: return set()
    k = m.group(4)
    if m.group(6) is not None:
        return {f'{k}{i}' for i in range(int(m.group(6)), int(m.group(7)) + 1)}
    return {f'{k}{int(m.group(5))}'}

class Ins:
    __slots__ = ('line', 'text', 'op', 'ops', 'mods', 'defs', 'uses', 'cls', 'passes', 'srcA', 'srcB', 'srcC', 'D', 'target', 'sdata', 'lds')

def split_ops(s):
    out, depth, cur = [], 0, ''
    for ch in s:
        if ch in '[(': depth += 1
        if ch in '])': depth -= 1
        if ch == ',' and depth == 0:
            out.append(cur.strip()); cur = ''
        else: cur += ch
    if cur.strip(): out.append(cur.strip())
    return out

def parse(text, line):
    I = Ins(); I.line = line; I.text = text
    parts = text.split(None, 1)
    op = parts[0]; rest = parts[1] if len(parts) > 1 else ''
    I.op = op
    ops = split_ops(rest)
    mods = ''
    if ops:
        last = ops[-1].split()
        if len(last) > 1 and not op.startswith('s_waitcnt'):
            ops[-1] = last[0]; mods = ' '.join(last[1:])
    I.ops = ops; I.mods = mods
    I.defs = set(); I.uses = set(); I.passes = 0
    I.srcA = I.srcB = I.srcC = I.D = set(); I.target = None; I.sdata = set(); I.lds = False
    R = [regs_of(o) for o in ops]
    base = re.sub(r'_(e32|e64|dpp|sdwa)$', '', op)
    if op.startswith('v_mfma') or op.startswith('v_smfmac'):
        I.cls = 'mfma'
        I.passes = 8 if '32x32' in op else 4
        I.D = R[0]; I.srcA = R[1]; I.srcB = R[2]
        if op.startswith('v_smfmac'):
            I.srcC = R[0]; I.srcB = R[2] | R[3]
        else: I.srcC = R[3]
        I.defs = set(I.D); I.uses = I.srcA | I.srcB | I.srcC
    elif op.startswith('v_'):
        I.cls = 'valu'
        if base.startswith('v_cmp'):
            I.defs = set(R[0]); I.uses = set().union(*R[1:])
            if base.startswith('v_cmpx'): I.defs.add('exec')
        elif base in ('v_readfirstlane_b32', 'v_readlane_b32'):
            I.defs = set(R[0]); I.uses = set().union(*R[1:])
        elif base.startswith('v_permlane') and 'swap' in base:
            I.defs = R[0] | R[1]; I.uses = R[0] | R[1]
        elif base in ('v_add_co_u32', 'v_sub_co_u32', 'v_addc_co_u32', 'v_subb_co_u32', 'v_div_scale_f32', 'v_mad_u64_u32'):
            I.defs = R[0] | R[1]; I.uses = set().union(*R[2:])
        elif base == 'v_nop':
            pass
        else:
            I.defs = set(R[0]); I.uses = set().union(*R[1:]) if len(R) > 1 else set()
            if base.startswith(('v_fmac', 'v_dot2c', 'v_pk_fmac', 'v_writelane')) or 'UNUSED_PRESERVE' in mods or op.endswith('_dpp') or 'row_' in mods or 'quad_perm' in mods:
                I.uses |= R[0]
            if base == 'v_cndmask_b32' and len(ops) == 3: I.uses.add('vcc')
        I.uses.add('exec')
    elif op.startswith(('buffer_', 'global_')):
        I.cls = 'vmem'
        lds = ' lds' in (' ' + mods) or 'load_lds' in op
        I.lds = lds
        if op in ('buffer_inv', 'buffer_wbl2'):
            pass
        elif lds:
            I.uses = set().union(*R) | {'m0'}
        elif 'load' in op:
            I.defs = set(R[0]); I.uses = set().union(*R[1:])
            if 'd16' in op: I.uses |= R[0]
        elif 'atomic' in op:
            I.uses = set().union(*R)
            if 'sc0' in mods: I.defs = set(R[0] if op.startswith('buffer') else R[0])
            I.sdata = R[0] if op.startswith('buffer') else R[1]
        else:
            I.uses = set().union(*R)
            I.sdata = R[0] if op.startswith('buffer') else R[1]
        I.uses.add('exec')
    elif op.startswith('ds_'):
        I.cls = 'ds'
        if 'read' in op or 'bpermute' in op or 'permute' in op or 'swizzle' in op:
            I.defs = set(R[0]); I.uses = set().union(*R[1:])
            if 'd16' in op: I.uses |= R[0]
        else:
            I.uses = set().union(*R)
        I.uses.add('exec')
    elif op.startswith(('s_load', 's_buffer_load', 's_memtime', 's_memrealtime')):
        I.cls = 'smem'
        I.defs = set(R[0]); I.uses = set().union(*R[1:]) if len(R) > 1 else set()
    elif op.startswith('s_'):
        I.cls = 'salu'
        if op in ('s_branch',) or op.startswith('s_cbranch'):
            I.cls = 'branch'; I.target = ops[0]
            if 'vcc' in op: I.uses = {'vcc'}
            if 'exec' in op: I.uses = {'exec'}
        elif op in ('s_nop', 's_waitcnt', 's_barrier', 's_endpgm', 's_sleep', 's_setprio', 's_sethalt'):
            I.cls = op[2:]
        elif op.startswith('s_cmp') or op.startswith('s_bitcmp'):
            I.uses = set().union(*R)
        else:
            I.defs = set(R[0]); I.uses = set().union(*R[1:]) if len(R) > 1 else set()
            if 'saveexec' in op: I.defs.add('exec'); I.uses.add('exec')
            if op in ('s_addk_i32', 's_mulk_i32', 's_cmovk_i32', 's_cmov_b32', 's_cmov_b64'): I.uses |= R[0]
    else:
        raise ValueError(f'line {line}: unknown instruction {text}')
    return I

NOCHK = set()
def load(asm):
    ins, labels, entries = [], {}, []
    in_text = True
    for n, raw in enumerate(asm.split('\n'), 1):
        t = raw.split(';')[0].strip()
        if not t: continue
        if t.startswith('.section') or t.startswith('.amdhsa_kernel'): in_text = False
        if t == '.text': in_text = True
        if t.startswith('.'): continue
        if not in_text: continue
        m = re.match(r'^([\w.$]+):\s*(.*)$', t)
        if m:
            labels[m.group(1)] = len(ins)
            if m.group(1).endswith('_kernel'): entries.append(len(ins))
            t = m.group(2)
            if not t: continue
        ins.append(parse(t, n))
        if 'nochk' in raw: NOCHK.add(n)
    return ins, labels, entries

def succ(ins, labels, i):
    I = ins[i]
    if I.cls == 'endpgm': return []
    if I.cls == 'branch':
        t = labels[I.target]
        return [t] if I.op == 's_branch' else [i + 1, t]
    return [i + 1] if i + 1 < len(ins) else []

def states(I):
    if I.cls == 'nop': return int(I.ops[0], 0) + 1
    return 1

def isv(r): return r[0] in 'va' and r[1:].isdigit()
def iss(r): return (r[0] == 's' and r[1:].isdigit()) or r == 'vcc'

def need(P, C):
    n = 0; why = ''
    def up(k, w):
        nonlocal n, why
        if k > n: n, why = k, w
    cb = re.sub(r'_(e32|e64|dpp|sdwa)$', '', C.op)
    if P.cls == 'valu':
        vd = {r for r in P.defs if isv(r)}
        sd = {r for r in P.defs if iss(r)}
        if C.cls == 'mfma' and vd & C.uses: up(2, 'valu->mfma')
        if C.cls == 'valu':
            if vd & C.uses:
                if cb.startswith('v_permlane'): up(2, 'valu->permlane')
                if C.op.endswith('_dpp') or 'row_' in C.mods or 'quad_perm' in C.mods: up(2, 'valu->dpp')
                if cb in ('v_readlane_b32', 'v_readfirstlane_b32'): up(1, 'valu->readlane')
                pb = re.sub(r'_(e32|e64|dpp|sdwa)$', '', P.op)
                if pb in TRANS and cb not in TRANS: up(1, 'trans->valu')
                if 'dst_sel' in P.mods or ('op_sel' in P.mods and not pb.startswith('v_pk')): up(1, 'opsel->valu')
                if pb.startswith('v_dot') and pb != cb: up(3, 'dot->other')
                if pb.startswith('v_dot') and pb == cb and vd & (set().union(*[regs_of(o) for o in C.ops[1:3]])): up(3, 'dot->dot ab')
            if vd & C.defs and re.sub(r'_(e32|e64|dpp|sdwa)$', '', P.op).startswith('v_dot') and not cb.startswith('v_dot'): up(3, 'dot->waw')
            if sd & C.uses:
                up(4 if cb in ('v_readlane_b32', 'v_writelane_b32') else 2, 'valu sgpr->valu')
        if C.cls in ('vmem', 'ds') and vd & C.uses and re.sub(r'_(e32|e64|dpp|sdwa)$', '', P.op).startswith('v_dot'): up(3, 'dot->mem')
        if C.cls == 'vmem' and sd & C.uses: up(5, 'valu sgpr->vmem')
        if 'exec' in P.defs:
            if C.cls == 'mfma': up(4, 'valu exec->mfma')
            if C.cls == 'valu' and (cb.startswith(('v_readlane', 'v_readfirstlane', 'v_writelane', 'v_permlane'))): up(4, 'cmpx->lane')
            if C.cls == 'valu' and (C.op.endswith('_dpp') or 'row_' in C.mods): up(5, 'cmpx->dpp')
    if P.cls == 'mfma':
        far = 12 if P.passes == 8 else 8
        if C.cls == 'mfma':
            if P.D & (C.srcA | C.srcB): up(far, 'mfma D->AB')
            if P.D & C.srcC and not (P.D == C.srcC and P.passes == C.passes): up(far - 2, 'mfma D->C partial')
            if P.D & C.D and not (P.D & C.srcC) and P.passes != C.passes: up(far, 'mfma D waw')
        elif C.cls in ('valu', 'vmem', 'ds'):
            if P.D & (C.uses | C.defs): up(far, 'mfma D->valu/mem')
            if C.cls == 'valu' and P.srcC & C.defs: up(7 if P.passes == 8 else 3, 'mfma srcC WAR')
    if P.cls == 'salu' and 'm0' in P.defs and C.cls == 'vmem' and C.lds: up(1, 'm0->ldsdma')
    if P.cls == 'vmem' and P.sdata and len(P.sdata) >= 3 and P.sdata & C.defs:
        up(2 if C.cls in ('valu', 'mfma') else 1, 'wide store WAR')
    return n, why

def check_hazards(ins, labels):
    errs = []
    for i, P in enumerate(ins):
        if P.cls not in ('valu', 'mfma', 'salu', 'vmem'): continue
        if P.cls == 'salu' and 'm0' not in P.defs: continue
        if P.cls == 'vmem' and not P.sdata: continue
        lim = 12 if P.cls == 'mfma' else 5
        stack = [(j, 0) for j in succ(ins, labels, i)]
        seen = set()
        while stack:
            j, d = stack.pop()
            if d >= lim or (j, d) in seen or j >= len(ins): continue
            seen.add((j, d))
            n, why = need(P, ins[j])
            if n > d: errs.append((ins[j].line, f'hazard {why}: need {n} have {d}: [{P.line}] {P.text}  ->  [{ins[j].line}] {ins[j].text}'))
            for k in succ(ins, labels, j): stack.append((k, d + states(ins[j])))
    return sorted(set(errs))

def check_waits(ins, labels, entries, maxvisit=3):
    errs = set()
    for e in entries:
        visits = {}
        stack = [(e, (), (), False)]
        seen = set()
        while stack:
            i, vm, lg, smem = stack.pop()
            while True:
                if i >= len(ins): break
                I = ins[i]
                key = (i, vm, lg)
                if I.cls == 'branch' or i in labels_set:
                    if key in seen: break
                    seen.add(key)
                    visits[i] = visits.get(i, 0) + 1
                    if visits[i] > 200: break
                touch = I.uses | I.defs
                for q, nm in ((vm, 'vmcnt'), (lg, 'lgkmcnt')):
                    for (regs, ln, kind) in q:
                        if regs & touch and not (kind == 'ds' and I.cls == 'ds' and not (regs & I.uses)) and not (kind == 'vm' and I.cls == 'vmem' and not (regs & I.uses)):
                            errs.add((I.line, f'{nm}: [{I.line}] {I.text} touches {sorted(regs & touch)[:4]} loaded at line {ln} without wait'))
                if I.cls == 'waitcnt' and I.line in NOCHK:
                    vm = ()
                if I.cls == 'waitcnt':
                    t = ' '.join(I.ops) + ' ' + I.mods
                    m = re.search(r'vmcnt\((\d+)\)', t)
                    if m:
                        n = int(m.group(1)); vm = vm[len(vm) - n:] if n < len(vm) else vm
                        if n == 0: vm = ()
                    m = re.search(r'lgkmcnt\((\d+)\)', t)
                    if m:
                        n = int(m.group(1))
                        if n == 0: lg = ()
                        elif not any(k == 'smem' for _, _, k in lg): lg = lg[len(lg) - n:] if n < len(lg) else lg
                elif I.cls == 'vmem' and I.op not in ('buffer_inv', 'buffer_wbl2'):
                    vm = vm + ((frozenset(I.defs), I.line, 'vm'),)
                    if len(vm) > 63:
                        errs.add((I.line, f'more than 63 vmem outstanding at [{I.line}]')); vm = vm[-63:]
                elif I.cls == 'ds':
                    lg = lg + ((frozenset(I.defs), I.line, 'ds'),)
                    if len(lg) > 40: lg = lg[-40:]
                elif I.cls == 'smem':
                    lg = lg + ((frozenset(I.defs), I.line, 'smem'),)
                s = succ(ins, labels, i)
                if not s: break
                for k in s[1:]: stack.append((k, vm, lg, smem))
                i = s[0]
    return sorted(errs)

def check(asm, quiet=False):
    global labels_set
    ins, labels, entries = load(asm)
    labels_set = set(labels.values())
    e1 = check_hazards(ins, labels)
    e2 = check_waits(ins, labels, entries)
    for _, m in e1 + e2: print(m)
    if not quiet: print(f'asmcheck: {len(ins)} instructions, {len(e1)} hazards, {len(e2)} wait problems')
    return len(e1) + len(e2)

if __name__ == '__main__':
    sys.exit(1 if check(open(sys.argv[1]).read()) else 0)
```

```python
from gen import *

QA, QB, KR, V0, V1, SA, SB, OA, OB, IDX = 12, 16, 20, 24, 28, 32, 48, 64, 80, 9
XP, GAR, GBR = 96, 100, 108
def EXP(r): return f"v_exp_f32 v{r}, v{r}"
def SM(O, V, S): return f"v_smfmac_f32_32x32x32_bf16 {vr(O,16)}, {vr(V,4)}, {vr(S,8)}, v{IDX}"
def QK(S, Q, c="0"): return f"v_mfma_f32_32x32x16_bf16 {vr(S,16)}, {vr(KR,4)}, {vr(Q,4)}, {c}"
ALL = (1 << 64) - 1

def phase2(g, opt):
    g(f"""s_and_b32 s36, {S_W}, 3
          s_lshr_b32 s37, {S_W}, 2
          s_lshl_b32 s32, {S_J}, 3
          s_lshl_b32 s33, s36, 1
          s_add_u32 s32, s32, s33
          s_add_u32 {S_QT}, s32, s37
          s_xor_b32 s33, {S_QT}, 1
          s_lshl_b32 s34, {S_G}, 16
          s_add_u32 s35, s34, {QF}
          s_lshl_b32 s32, {S_QT}, 10
          s_add_u32 s42, s35, s32
          s_lshl_b32 s33, s33, 10
          s_add_u32 s43, s35, s33
          s_and_b32 s32, {S_W}, 1
          s_mul_i32 s38, s32, {VF - KF}
          s_add_u32 s38, s38, s34
          s_add_u32 s38, s38, {KF}
          s_bfe_u32 s33, {S_W}, 0x10001
          s_lshl_b32 s34, s33, 15
          s_add_u32 s38, s38, s34
          s_mul_i32 s44, s32, {VSTR - 1024}
          s_add_u32 s44, s44, 1024
          s_lshl_b32 s33, s33, 5
          s_add_u32 s33, s33, s37
          s_mul_i32 s39, s33, s44
          s_mul_i32 s32, s32, {L_V}
          s_add_u32 s39, s39, s32
          s_lshl_b32 s44, s44, 1
          s_lshl_b32 s45, {S_J}, 2
          s_add_u32 s45, s45, s37
          s_lshl_b32 s45, s45, 10
          s_lshl_b32 s32, {S_G}, 1
          s_and_b32 s33, {S_W}, 1
          s_add_u32 {S_TB}, s32, s33
          s_lshl_b32 s32, s37, 1
          s_add_u32 {S_KQ}, s32, s33
          s_lshl_b32 s32, {S_J}, 2
          s_and_b32 s33, {S_W}, 2
          s_add_u32 s32, s32, s33
          s_add_u32 {S_C16}, s32, s37
          s_mul_i32 {S_ROT}, {S_J}, 7
          s_add_u32 s63, {S_ROT}, {S_W}
          s_lshr_b32 {S_ROT}, {S_ROT}, 1
          s_lshl_b32 s32, s37, 15
          v_add_u32 v4, s32, {V_L16}
          s_mul_i32 s32, s37, {32*VSTR}
          s_add_u32 s32, s32, {L_V}
          v_lshrrev_b32 v10, 5, {V_LANE}
          v_lshlrev_b32 v5, 8, v10
          v_and_b32 v10, 15, {V_LANE}
          v_lshl_add_u32 v5, v10, 4, v5
          v_add_u32 v6, 512, v5
          v_and_b32 v10, 27, {V_LANE}
          v_cmp_eq_u32 vcc, 16, v10
          v_mov_b32 v11, {1024 if opt.get('allones') else 1040}
          v_mov_b32 v7, 1024
          v_cndmask_b32 v11, v11, v7, vcc
          v_and_b32 v10, 16, {V_LANE}
          v_cmp_ne_u32 vcc, 0, v10
          v_mov_b32 v{IDX}, 0xdddddddd
          v_mul_u32_u24 v7, {VSTR}, {V_LANE}
          v_cndmask_b32 v5, v5, v11, vcc
          v_cndmask_b32 v6, v6, v11, vcc
          v_add_u32 v5, s32, v5
          v_add_u32 v6, s32, v6
          v_add_u32 v7, {L_V + 1024}, v7""")
    for i in range(4): g(f"v_mov_b32 v{V0+i}, 0x3f803f80\nv_mov_b32 v{V1+i}, 0")
    for i in range(16): g(f"v_mov_b32 v{OA+i}, 0\nv_mov_b32 v{OB+i}, 0")
    for i in range(8, 16): g(f"v_mov_b32 v{SB+i}, 0")
    g("s_barrier")
    stamp(g, opt, 7)
    def kv(r):
        return f"""s_and_b32 s45, s45, 32767
              s_add_u32 s32, s45, s38
              s_mov_b32 m0, s39
              s_add_u32 s45, s45, 2048
              buffer_load_dwordx4 {V_L16}, {WS}, s32 offen sc1 lds
              s_add_u32 s39, s39, s44"""
    g(kv(0))
    g(f"""buffer_load_dwordx4 {vr(QA,4)}, {V_L16}, {WS}, s42 offen sc1
          buffer_load_dwordx4 {vr(QB,4)}, {V_L16}, {WS}, s43 offen sc1""")
    g(kv(1))
    g(f"ds_write_b128 v7, {vr(V0,4)}\nds_write_b128 v7, {vr(V1,4)} offset:16")
    g(f"""s_min_u32 s32, s63, 55
          s_add_u32 s32, s32, {J_W1}
          s_lshl_b32 s33, {S_J}, 1
          v_add_u32 v8, {J_WO - 1}, {V_LANE}
          v_add_u32 v8, s33, v8
          v_cmp_eq_u32 vcc, 0, {V_LANE}
          v_mov_b32 v10, s32
          v_subrev_u32 v11, 3, {V_LANE}
          v_cndmask_b32 v8, v8, v10, vcc
          v_lshrrev_b32 v10, 1, v11
          v_lshlrev_b32 v10, 4, v10
          v_and_b32 v11, 1, v11
          v_add3_u32 v10, v10, v11, s33
          v_add_u32 v10, {J_W2}, v10
          v_cmp_lt_u32 vcc, 2, {V_LANE}
          s_lshl_b32 s32, {S_C16}, 6
          s_add_u32 s32, s32, {MODG + 1024*4 + 4}
          v_cndmask_b32 v8, v8, v10, vcc
          v_lshlrev_b32 v8, 7, v8
          v_add_u32 v8, {FW}, v8
          v_and_b32 v10, 7, {V_LANE}
          v_lshl_add_u32 v10, v10, 3, s32
          v_bfe_u32 v11, {V_LANE}, 3, 1
          v_mul_u32_u24 v11, {1536*4}, v11
          v_add_u32 v10, v10, v11
          v_cmp_lt_u32 vcc, 15, {V_LANE}
          s_lshl_b32 s46, {S_TB}, 15
          s_lshl_b32 s32, {S_C16}, 5
          s_add_u32 s46, s46, s32
          v_cndmask_b32 v8, v8, v10, vcc
          s_waitcnt vmcnt(1) lgkmcnt(0)
          s_barrier""")
    stamp(g, opt, 8)
    g(f"""ds_read_b128 {vr(KR,4)}, v4
          ds_read_b128 {vr(V0,4)}, v5
          s_waitcnt lgkmcnt(1)
          {QK(SA, QA)}""")
    g(kv(2)); g(kv(3))
    T = 32
    CHK = 0xffff07ff
    extras = {t: [] for t in range(T)}
    nr = 4
    for t in range(1, 7):
        extras[t] = [kv(nr), kv(nr + 1)]; nr += 2
    extras[9] = [f"""s_mov_b32 exec_lo, {CHK:#x}
                     s_mov_b32 exec_hi, 0
                     buffer_load_dword v120, v8, {WS}, 0 offen sc1
                     s_mov_b64 exec, -1"""]
    q = 0
    for t in range(11, 32):
        for _ in range(2 if t < 22 else 1):
            extras[t].append(f"""s_and_b32 s45, s45, 32767
                s_add_u32 s32, s45, s38
                s_add_u32 s45, s45, 1024
                buffer_load_dwordx4 {ar(4*q,4)}, {V_L16}, {WS}, s32 offen sc1""")
            q += 1
    assert q == 32
    extras[24].append(f"buffer_load_dword v121, {V_L128}, {WS}, s47 offen")
    extras[26].append(f"""s_cmp_lg_u32 {S_W}, 0
                          s_cselect_b32 s32, {BIG}, s48
                          buffer_load_dword v122, {V_L128}, {WS}, s32 offen""")
    extras[28].append(f"""buffer_load_dwordx2 {vr(XP,2)}, v8, {XS}, s46 offen
                          buffer_load_dwordx2 {vr(XP+2,2)}, v8, {XS}, s46 offen offset:16""")
    prio = opt.get("prio", 1)
    for t in range(T):
        if t == 1: g("s_waitcnt vmcnt(2)\ns_barrier")
        if t == 3: g("s_waitcnt vmcnt(2)\ns_barrier")
        if t == 11:
            lp, ok = g.lab("chk"), g.lab("chkok")
            g(f"""s_waitcnt vmcnt(0)
                  s_mov_b32 exec_lo, {CHK:#x}
                  s_mov_b32 exec_hi, 0
                  v_cmp_ne_u32 vcc, {S_TAG}, v120
                  s_cbranch_vccz {ok}""")
            poll_flags(g, "v8", "0", CHK)
            g(f"""{ok}:
                  s_mov_b64 exec, -1
                  s_lshl_b32 s38, s63, 15
                  s_add_u32 s38, s38, {W1F}
                  s_cmp_eq_u32 {S_W}, 7
                  s_cselect_b32 s38, {BIG}, s38
                  s_lshl_b32 s45, {S_J}, 12
                  s_and_b32 s33, {S_G}, 3
                  s_lshl_b32 s32, {S_J}, 16
                  s_lshl_b32 s48, s33, 14
                  s_add_u32 s48, s48, s32
                  s_add_u32 s48, s48, {WOF}
                  s_mul_i32 s47, {S_J}, {224*1024}
                  s_mul_i32 s33, s33, {56*1024}
                  s_add_u32 s47, s47, s33
                  s_lshl_b32 s33, {S_W}, 13
                  s_add_u32 s47, s47, s33
                  s_add_u32 s47, s47, {W2F}
                  s_add_u32 s32, s48, 8192
                  s_cmp_eq_u32 {S_W}, 7
                  s_cselect_b32 s47, s32, s47
                  v_and_b32 v10, 31, {V_LANE}
                  v_lshlrev_b32 v8, 10, v10
                  v_lshrrev_b32 v10, 5, {V_LANE}
                  v_lshl_add_u32 v8, v10, 3, v8
                  s_barrier""")
        extra = extras[t]
        for e in range(32):
            if prio and e == 0: g("s_setprio 1")
            if prio and e == 16: g("s_setprio 0")
            g(EXP(SA + e) if e < 16 else EXP(SB + e - 16))
            if e == 1: g(SM(OB, V1, SB + 8)); g(f"ds_read_b128 {vr(V1,4)}, v6 offset:{t*VSTR}")
            if e == 5: g(QK(SB, QB)); g(f"ds_read_b128 {vr(KR,4)}, v4 offset:{(t+1)*1024}")
            if e == 10: g("s_waitcnt lgkmcnt(2)"); g(SM(OA, V0, SA))
            if e == 13 and extra: g(extra.pop(0))
            if e == 17: g("s_waitcnt lgkmcnt(0)"); g(SM(OA, V1, SA + 8))
            if e == 21: g(QK(SA, QA))
            if e == 26: g(SM(OB, V0, SB)); g(f"ds_read_b128 {vr(V0,4)}, v5 offset:{(t+1)*VSTR}")
            if e == 29:
                while extra: g(extra.pop(0))
    g(f"""s_mul_i32 s32, {S_W}, 2304
          s_add_u32 s32, s32, {L_EX}
          {SM(OB, V1, SB + 8)}
          v_add_u32 v7, s32, {V_L16}
          v_add_u32 v10, s32, {V_L4}
          s_xor_b32 s33, {S_W}, 4
          s_mul_i32 s33, s33, 2304
          s_add_u32 s33, s33, {L_EX}
          v_add_u32 v11, s33, {V_L16}
          v_add_u32 v4, s33, {V_L4}
          s_lshl_b32 s32, {S_QT}, 5
          s_add_u32 s32, s32, {S_G}
          s_lshl_b32 s32, s32, 10
          s_add_u32 s42, s32, {OF}
          s_nop 0""")
    stamp(g, opt, 9)
    g(f"""ds_write_b128 v7, {vr(OB,4)}
          ds_write_b128 v7, {vr(OB+4,4)} offset:1024
          ds_write_b32 v10, v{OB+8} offset:2048
          s_waitcnt lgkmcnt(0)
          s_barrier
          ds_read_b128 {vr(SB,4)}, v11
          ds_read_b128 {vr(SB+4,4)}, v11 offset:1024
          ds_read_b32 v{SB+8}, v4 offset:2048
          s_mov_b32 s32, {f32(2.0**100)}
          s_mov_b32 s33, {f32(2.0**126)}
          s_waitcnt lgkmcnt(0)""")
    for i in range(9): g(f"v_add_f32 v{OA+i}, v{OA+i}, v{SB+i}")
    g(f"v_add_f32 v10, abs(v{OA}), abs(v{OA+1})")
    for i in range(2, 8): g(f"v_add_f32 v10, v10, abs(v{OA+i})")
    g(f"""v_cmp_nle_f32 vcc, {f32(2.0**-64)}, v{OA+8}
          v_cmp_nge_f32 s[40:41], s32, v{OA+8}
          s_or_b64 vcc, vcc, s[40:41]
          v_cmp_nge_f32 s[40:41], s33, v10
          s_or_b64 vcc, vcc, s[40:41]""")
    if opt.get("force_fb"): g("s_mov_b64 vcc, -1")
    g(f"""s_cbranch_vccnz L_fallback
          L_fb_ret:
          v_rcp_f32 v10, v{OA+8}
          s_nop 0""")
    for i in range(8): g(f"v_mul_f32 v{OA+i}, v{OA+i}, v10")
    for i in range(4): g(f"v_cvt_pk_bf16_f32 v{SB+i}, v{OA+2*i}, v{OA+2*i+1}")
    g(f"buffer_store_dwordx4 {vr(SB,4)}, {V_L16}, {WS}, s42 offen sc1")
    opt["_tail"].append(fallback)

def fallback(g):
    g(f"""L_fallback:
          v_mov_b32 v4, {V_L16}
          v_mov_b32 v10, 0xff800000
          s_mov_b32 s32, 64
          L_fb1:
          ds_read_b128 {vr(KR,4)}, v4
          v_add_u32 v4, 1024, v4
          s_waitcnt lgkmcnt(0)
          {QK(SA, QA)}
          s_nop 11""")
    for i in range(0, 16, 2): g(f"v_max3_f32 v10, v10, v{SA+i}, v{SA+i+1}")
    g(f"""s_sub_u32 s32, s32, 1
          s_cmp_lg_u32 s32, 0
          s_cbranch_scc1 L_fb1
          v_mov_b32 v11, v10
          s_nop 1
          v_permlane32_swap_b32 v10, v11
          v_max_f32 v10, v10, v11""")
    for i in range(16): g(f"v_sub_f32 v{SB+i}, 0, v10\nv_mov_b32 v{OA+i}, 0")
    g(f"""s_mul_i32 s33, s37, {32*VSTR}
          v_subrev_u32 v7, s33, v5
          v_subrev_u32 v11, s33, v6
          v_mov_b32 v4, {V_L16}
          s_mov_b32 s32, 64
          L_fb2:
          ds_read_b128 {vr(KR,4)}, v4
          ds_read_b128 {vr(V0,4)}, v7
          ds_read_b128 {vr(V1,4)}, v11
          v_add_u32 v4, 1024, v4
          v_add_u32 v7, {VSTR}, v7
          v_add_u32 v11, {VSTR}, v11
          s_waitcnt lgkmcnt(0)
          {QK(SA, QA, vr(SB,16))}
          s_nop 11""")
    for i in range(16): g(EXP(SA + i))
    g(f"""s_nop 1
          {SM(OA, V0, SA)}
          {SM(OA, V1, SA + 8)}
          s_sub_u32 s32, s32, 1
          s_cmp_lg_u32 s32, 0
          s_cbranch_scc1 L_fb2
          s_nop 11
          s_branch L_fb_ret""")

L_O, L_WO, L_EX3 = 0, 65536, 131072
U, B = 64, 80
def phase3(g, opt):
    g(f"""s_and_b32 s32, {S_W}, 1
          s_bfe_u32 s33, {S_W}, 0x10001
          s_lshl_b32 s34, s32, 1
          s_add_u32 s34, s34, s33
          s_lshl_b32 s34, s34, 4             ; a*32 + kh'*16
          s_add_u32 s39, s34, s37
          s_lshl_b32 s39, s39, 10
          s_lshl_b32 s34, s34, 10
          s_lshl_b32 s35, {S_J}, 16
          s_add_u32 s38, s34, s35
          s_add_u32 s38, s38, {WOF}          ; (2j+a)*32*1024 + kh'*16*1024
          s_lshl_b32 s35, {S_G}, 16
          s_add_u32 s47, s34, s35
          s_add_u32 s47, s47, {OF}           ; (2g+a)*32*1024 + kh'*16*1024
          s_lshl_b32 s44, {S_J}, 1
          s_add_u32 s44, s44, s37
          s_lshl_b32 s44, s44, 10
          s_mov_b32 s45, s44
          v_lshrrev_b32 v10, 5, {V_LANE}
          v_lshlrev_b32 v7, 4, v10
          s_waitcnt vmcnt(0)
          s_barrier
          s_cmp_lg_u32 {S_W}, 0
          s_cbranch_scc1 L_p3_a
          s_lshl_b32 s32, {S_J}, 5
          s_add_u32 s32, s32, {S_G}
          s_lshl_b32 s32, s32, 7
          s_add_u32 s32, s32, {FO}""")
    set_flag(g, "s32")
    g("L_p3_a:")
    stamp(g, opt, 10)
    def dma(base, lds0, r):
        g(f"""s_and_b32 s45, s45, 16383
              s_add_u32 s32, s45, {base}
              s_add_u32 m0, s39, {lds0 + r*2048}
              s_add_u32 s45, s45, 2048
              buffer_load_dwordx4 {V_L16}, {WS}, s32 offen sc1 lds""")
    for r in range(8): dma("s38", L_WO, r)
    g(f"""s_lshl_b32 s32, {S_C16}, 6
          s_add_u32 s33, s32, {MODG + 2560*4}
          s_add_u32 s32, s32, {MODG + 1024*4}
          buffer_load_dwordx4 {vr(GAR,4)}, v7, {WS}, s32 offen sc1
          buffer_load_dwordx4 {vr(GAR+4,4)}, v7, {WS}, s32 offen offset:32 sc1
          buffer_load_dwordx4 {vr(GBR,4)}, v7, {WS}, s33 offen sc1
          buffer_load_dwordx4 {vr(GBR+4,4)}, v7, {WS}, s33 offen offset:32 sc1
          s_and_b32 s32, {S_W}, 1
          s_lshl_b32 s32, s32, 1
          s_add_u32 s32, s32, s37
          s_lshl_b32 s32, s32, 14
          v_add_u32 v4, s32, {V_L16}
          s_and_b32 s32, {S_W}, 2
          s_add_u32 s32, s32, s37
          s_lshl_b32 s32, s32, 14
          s_add_u32 s32, s32, {L_WO}
          v_add_u32 v5, s32, {V_L16}
          s_mov_b32 s45, s44
          s_cmp_lg_u32 {S_W}, 0
          s_cbranch_scc1 L_p3_b
          s_lshr_b32 s32, {S_G}, 2
          s_lshl_b32 s32, s32, 12
          s_add_u32 s32, s32, {FO}""")
    poll_flags(g, V_L128, "s32", 0xffffffff)
    g("L_p3_b:\ns_barrier")
    stamp(g, opt, 11)
    for r in range(4): dma("s47", L_O, r)
    ACC = 32
    for c in range(4):
        g(f"s_waitcnt vmcnt({2 if c < 3 else 0})\ns_barrier")
        for kk in range(4 * c, 4 * c + 4):
            b = 48 + 8 * (kk & 3)
            g(f"ds_read_b128 {vr(b,4)}, v5 offset:{kk*1024}\nds_read_b128 {vr(b+4,4)}, v4 offset:{kk*1024}")
        if c < 2:
            dma("s47", L_O, 2 * c + 4); dma("s47", L_O, 2 * c + 5)
        for kk in range(4 * c, 4 * c + 4):
            b = 48 + 8 * (kk & 3)
            g(f"s_waitcnt lgkmcnt({2*(3-(kk&3))})")
            g(f"v_mfma_f32_32x32x16_bf16 {vr(ACC,16)}, {vr(b,4)}, {vr(b+4,4)}, {'0' if kk == 0 else vr(ACC,16)}")
    g(f"""s_lshl_b32 s32, {S_W}, 11
          s_add_u32 s32, s32, {L_EX3}
          v_add_u32 v4, s32, {V_L16}
          s_xor_b32 s32, s32, {4 << 11}
          v_add_u32 v5, s32, {V_L16}
          s_lshl_b32 s33, {S_TB}, 5
          s_add_u32 s33, s33, {S_C16}
          s_lshl_b32 s33, s33, 10
          s_add_u32 s42, s33, {X1F}
          s_cmp_lg_u32 s37, 0
          s_nop 2
          s_cbranch_scc1 L_p3_k1
          ds_write_b128 v4, {vr(ACC+8,4)}
          ds_write_b128 v4, {vr(ACC+12,4)} offset:1024
          s_branch L_p3_k2
          L_p3_k1:
          ds_write_b128 v4, {vr(ACC,4)}
          ds_write_b128 v4, {vr(ACC+4,4)} offset:1024""")
    for i in range(8): g(f"v_mov_b32 v{ACC+i}, v{ACC+8+i}")
    g("L_p3_k2:")
    unpack(g, 56, XP, 4)
    unpack(g, 12, GAR, 4, 2)
    g(f"""s_waitcnt lgkmcnt(0)
          s_barrier
          ds_read_b128 v[48:51], v5
          ds_read_b128 v[52:55], v5 offset:1024
          s_lshl_b32 s32, {S_G}, 3
          s_add_u32 s32, s32, {S_J}
          s_lshl_b32 s43, s32, 7
          s_waitcnt lgkmcnt(0)""")
    for i in range(8): g(f"v_add_f32 v{ACC+i}, v{ACC+i}, v{48+i}")
    for i in range(8): g(f"v_fma_f32 v{ACC+i}, v{ACC+i}, v{12+i}, v{56+i}")
    for i in range(4): g(f"v_cvt_pk_bf16_f32 v{XP+i}, v{ACC+2*i}, v{ACC+2*i+1}")
    g(f"buffer_store_dwordx4 {vr(XP,4)}, {V_L16}, {WS}, s42 offen sc1")

L_X1, L_ST4 = 0, 65536
def phase4(g, opt):
    g(f"""s_and_b32 s32, {S_W}, 1
          s_lshr_b32 s33, {S_W}, 1
          s_lshl_b32 s39, s32, 5
          s_add_u32 s39, s39, s33
          s_lshl_b32 s39, s39, 10
          s_lshl_b32 s38, {S_TB}, 15
          s_add_u32 s38, s38, {X1F}
          s_lshl_b32 s45, {S_J}, 2
          s_add_u32 s45, s45, s33
          s_lshl_b32 s45, s45, 10
          s_add_u32 s32, s43, {FX}
          s_waitcnt vmcnt(0)
          s_barrier
          s_cmp_lg_u32 {S_W}, 0
          s_cbranch_scc1 L_p4_nf""")
    set_flag(g, "s32")
    g("L_p4_nf:")
    stamp(g, opt, 12)
    if opt.get("ptouch", 1):
        g(f"""s_mov_b64 exec, 0xff
              buffer_load_dword v121, {V_L128}, {WS}, s42 offen
              s_mov_b64 exec, -1""")
    g(f"""s_lshl_b32 s46, s63, 7
          s_add_u32 s46, s46, {UV}
          s_add_u32 s47, s46, {BV - UV}""")
    for jj in range(4):
        g(f"buffer_load_dwordx4 {vr(U+4*jj,4)}, v7, {WS}, s46 offen offset:{jj*32} sc1")
        g(f"buffer_load_dwordx4 {vr(B+4*jj,4)}, v7, {WS}, s47 offen offset:{jj*32} sc1")
    g(f"""s_lshr_b32 s33, {S_C16}, 1
          s_mul_i32 s46, s33, {112*1024}
          s_mul_i32 s33, {S_KQ}, {28*1024}
          s_add_u32 s46, s46, s33
          s_add_u32 s46, s46, {W2F}
          s_lshl_b32 s44, {S_ROT}, 10
          s_mul_i32 s42, {S_G}, {2*112*1024}
          s_lshl_b32 s32, s63, 11
          s_add_u32 s42, s42, s32
          s_add_u32 s42, s42, {H1F}
          s_add_u32 s47, s42, {112*1024}
          s_mov_b32 s48, {f32(-LOG2E)}
          s_mov_b32 s49, s48
          s_cmp_lg_u32 {S_W}, 0
          s_cbranch_scc1 L_p4_a
          s_lshl_b32 s32, {S_G}, 10
          s_add_u32 s32, s32, {FX}""")
    poll_flags(g, V_L128, "s32", 0xff)
    g("L_p4_a:\ns_barrier")
    stamp(g, opt, 13)
    def dma(r):
        g(f"""s_and_b32 s45, s45, 32767
              s_add_u32 s32, s45, s38
              s_add_u32 m0, s39, {L_X1 + r*4096}
              s_add_u32 s45, s45, 4096
              buffer_load_dwordx4 {V_L16}, {WS}, s32 offen sc1 lds""")
    def w2load(q):
        g(f"""s_add_u32 s32, s46, s44
              buffer_load_dwordx4 {ar(4*q,4)}, {V_L16}, {WS}, s32 offen sc1
              s_add_u32 s44, s44, 1024
              s_cmp_eq_u32 s44, {28*1024}
              s_cselect_b32 s44, 0, s44""")
    for r in range(4): dma(r)
    A0, A1 = 32, 48
    BUF = [12, 20]
    def rd(q):
        b = BUF[q & 1]
        g(f"ds_read_b128 {vr(b,4)}, {V_L16} offset:{q*1024}\nds_read_b128 {vr(b+4,4)}, {V_L16} offset:{32768+q*1024}")
    def loop(body):
        for (q0, q1, vm) in ((0, 4, 3), (4, 8, 6), (8, 32, 4)):
            g(f"s_waitcnt vmcnt({vm})\ns_barrier")
            rd(q0)
            for q in range(q0, q1):
                if q + 1 < q1:
                    rd(q + 1); g("s_waitcnt lgkmcnt(2)")
                else: g("s_waitcnt lgkmcnt(0)")
                body(q, BUF[q & 1])
                if q < 4: dma(q + 4)
                else: w2load(q - 4)
    g(f"""s_cmp_eq_u32 {S_W}, 7
          s_cbranch_scc1 L_p4_stat""")
    def mm(q, b):
        g(f"v_mfma_f32_32x32x16_bf16 {vr(A0,16)}, {ar(4*q,4)}, {vr(b,4)}, {'0' if q == 0 else vr(A0,16)}")
        g(f"v_mfma_f32_32x32x16_bf16 {vr(A1,16)}, {ar(4*q,4)}, {vr(b+4,4)}, {'0' if q == 0 else vr(A1,16)}")
    loop(mm)
    stamp(g, opt, 14)
    lds_spin(g, 8, 1)
    g(f"""v_and_b32 v10, 31, {V_LANE}
          v_lshlrev_b32 v4, 3, v10
          v_add_u32 v4, {L_ST4}, v4
          s_mov_b32 s40, 1.0
          s_mov_b32 s41, 1.0
          ds_read_b64 v[8:9], v4
          ds_read_b64 v[10:11], v4 offset:256
          s_waitcnt lgkmcnt(0)""")
    for i, (A, st, so) in enumerate(((A0, 8, "s42"), (A1, 10, "s47"))):
        for p2 in range(4):
            ps = (2 * p2, 2 * p2 + 1)
            a = [vr(A + 2 * p, 2) for p in ps]; t = [vr(116, 2), vr(120, 2)]; e = [118, 122]
            for k in range(2): g(f"v_pk_fma_f32 {t[k]}, {vr(U+2*ps[k],2)}, {vr(st,2)}, {vr(B+2*ps[k],2)} op_sel_hi:[1,0,1]")
            for k in range(2): g(f"v_pk_fma_f32 {a[k]}, {a[k]}, {vr(st,2)}, {t[k]} op_sel:[0,1,0] op_sel_hi:[1,1,1]")
            for k in range(2): g(f"v_pk_mul_f32 {vr(e[k],2)}, {a[k]}, s[48:49]")
            for k in range(2): g(f"v_exp_f32 v{e[k]}, v{e[k]}\nv_exp_f32 v{e[k]+1}, v{e[k]+1}")
            g(f"v_pk_add_f32 {vr(e[0],2)}, {vr(e[0],2)}, s[40:41]")
            g(f"v_pk_add_f32 {vr(e[1],2)}, {vr(e[1],2)}, s[40:41]")
            for k in range(2): g(f"v_rcp_f32 v{e[k]}, v{e[k]}\nv_rcp_f32 v{e[k]+1}, v{e[k]+1}")
            for k in range(2): g(f"v_pk_mul_f32 {a[k]}, {a[k]}, {vr(e[k],2)}")
            for k in range(2): g(f"v_cvt_pk_bf16_f32 v{12+8*i+ps[k]}, v{A+2*ps[k]}, v{A+2*ps[k]+1}")
            if p2 & 1:
                g(f"buffer_store_dwordx4 {vr(12+8*i+4*(p2>>1),4)}, {V_L16}, {WS}, {so} offen offset:{(p2>>1)*1024} sc1")
    g("s_waitcnt vmcnt(0)")
    if opt.get("ptouch", 1):
        g(f"""s_mov_b64 exec, 0xffff
              buffer_load_dword v121, {V_L128}, {WS}, s42 offen
              buffer_load_dword v122, {V_L128}, {WS}, s47 offen
              s_mov_b64 exec, -1""")
    g("s_branch L_p4_end")
    g(f"""L_p4_stat:
          s_mov_b32 s40, 0x3f803f80""")
    for i in range(4): g(f"v_mov_b32 v{32+i}, 0")
    def st(q, b):
        for k in range(4):
            g(f"""v_dot2_f32_bf16 v32, v{b+k}, s40, v32
                  v_dot2_f32_bf16 v33, v{b+k}, v{b+k}, v33
                  v_dot2_f32_bf16 v34, v{b+4+k}, s40, v34
                  v_dot2_f32_bf16 v35, v{b+4+k}, v{b+4+k}, v35""")
    g("s_setprio 2")
    loop(st)
    g(f"""v_and_b32 v10, 31, {V_LANE}
          v_lshlrev_b32 v4, 3, v10
          v_add_u32 v4, {L_ST4}, v4""")
    for i in range(2):
        s, q = 32 + 2 * i, 33 + 2 * i
        g(f"""s_nop 1
              v_permlane32_swap_b32 v{s}, v{q}
              v_add_f32 v{s}, v{s}, v{q}
              v_mov_b32 v{q}, v{s}
              s_nop 1
              v_permlane32_swap_b32 v{s}, v{q}
              v_mul_f32 v{s}, {f32(1/512)}, v{s}
              v_mul_f32 v{q}, {f32(1/512)}, v{q}
              v_fma_f32 v{q}, -v{s}, v{s}, v{q}
              v_max_f32 v{q}, 0, v{q}
              v_add_f32 v{q}, {f32(1e-5)}, v{q}
              v_rsq_f32 v{q}, v{q}
              s_nop 0
              v_mul_f32 v{s}, -v{s}, v{q}
              ds_write_b64 v4, {vr(s,2)} offset:{i*256}""")
    g(f"""v_mov_b32 v11, {L_CNT + 8}
          v_mov_b32 v10, 1
          ds_write_b32 v11, v10
          s_setprio 0
          s_waitcnt lgkmcnt(0)
          L_p4_end:""")
    stamp(g, opt, 15)

L_RING, L_RED5 = 0, 98304
def phase5(g, opt):
    RING = 12
    AH = opt.get("ah5", 4)
    g(f"""s_and_b32 s33, {S_W}, 3
          s_mul_i32 s38, {S_G}, {2*112*1024}
          s_mul_i32 s32, s33, {28*1024}
          s_add_u32 s38, s38, s32
          s_add_u32 s38, s38, {H1F}
          s_add_u32 s44, {S_ROT}, s37
          s_lshl_b32 s44, s44, 10
          s_mov_b32 s45, s44
          s_lshl_b32 s33, s33, 1
          s_add_u32 s33, s33, s37
          s_lshl_b32 s39, s33, 10
          s_lshl_b32 s32, {S_KQ}, 11
          v_add_u32 v4, s32, {V_L16}
          v_add_u32 v5, 49152, v4
          s_and_b32 s32, {S_W}, 2
          s_lshl_b32 s32, s32, 13
          s_add_u32 s32, s32, {L_RED5}
          s_lshl_b32 s33, {S_KQ}, 11
          s_add_u32 s33, s33, s32
          v_add_u32 v6, s33, {V_L16}
          s_lshl_b32 s33, s37, 13
          s_add_u32 s33, s33, s32
          s_and_b32 s32, {S_W}, 1
          s_lshl_b32 s32, s32, 15
          s_add_u32 s33, s33, s32
          v_add_u32 v9, s33, {V_L16}
          s_lshl_b32 s46, {S_TB}, 15
          s_lshl_b32 s32, {S_C16}, 5
          s_add_u32 s46, s46, s32
          v_and_b32 v10, 31, {V_LANE}
          v_lshlrev_b32 v8, 10, v10
          v_add_u32 v8, v8, v7""")
    unpack(g, 12, XP, 4)
    unpack(g, 20, GBR, 4, 2)
    g(f"""s_barrier
          s_cmp_lg_u32 {S_W}, 0
          s_cbranch_scc1 L_p5_a
          s_add_u32 s32, s43, {FG}""")
    set_flag(g, "s32")
    g(f"""s_lshl_b32 s32, {S_G}, 10
          s_add_u32 s32, s32, {FG}""")
    poll_flags(g, V_L128, "s32", 0xff)
    g("L_p5_a:\ns_waitcnt vmcnt(0)\ns_barrier")
    stamp(g, opt, 16)
    def dma(R):
        if R == 14: g(f"s_add_u32 s38, s38, {112*1024}\ns_mov_b32 s45, s44")
        g(f"""s_add_u32 s32, s38, s45
              s_add_u32 m0, s39, {L_RING + (R % RING)*8192}
              s_add_u32 s45, s45, 2048
              buffer_load_dwordx4 {V_L16}, {WS}, s32 offen sc1 lds
              s_cmp_ge_u32 s45, {28*1024}
              s_cselect_b32 s32, {28*1024}, 0
              s_sub_u32 s45, s45, s32""")
    def final():
        for k in range(4):
            g(f"ds_read_b128 {vr(64+8*k,4)}, v9 offset:{k*2048}\nds_read_b128 {vr(68+8*k,4)}, v9 offset:{k*2048+1024}")
        g("s_waitcnt lgkmcnt(4)")
        for i in range(8): g(f"v_add_f32 v{64+i}, v{64+i}, v{72+i}")
        g("s_waitcnt lgkmcnt(0)")
        for i in range(8): g(f"v_add_f32 v{80+i}, v{80+i}, v{88+i}")
        for i in range(8): g(f"v_add_f32 v{64+i}, v{64+i}, v{80+i}")
        for i in range(8): g(f"v_fma_f32 v{64+i}, v{64+i}, v{20+i}, v{12+i}")
        for i in range(4): g(f"v_cvt_pk_bf16_f32 v{XP+i}, v{64+2*i}, v{65+2*i}")
        g(f"""s_nop 1
              v_permlane32_swap_b32 v{XP}, v{XP+2}
              v_permlane32_swap_b32 v{XP+1}, v{XP+3}
              buffer_store_dwordx4 {vr(XP,4)}, v8, {OS}, s46 offen""")
    def redw(i):
        A = (32, 48)[i]
        for s in range(2):
            g(f"ds_write_b128 v6, {vr(A+8*s,4)} offset:{i*32768+s*8192}\nds_write_b128 v6, {vr(A+8*s+4,4)} offset:{i*32768+s*8192+1024}")
    for R in range(AH): dma(R)
    issued = AH
    for c in range(14):
        R0 = 2 * c
        g(f"s_waitcnt vmcnt({issued - R0 - 2})\ns_barrier")
        for k in range(4):
            R = R0 + (k >> 1)
            va, off = ("v4", (R % RING) * 8192) if (R % RING) < 6 else ("v5", (R % RING - 6) * 8192)
            g(f"ds_read_b128 {vr(64+4*k,4)}, {va} offset:{off + (k&1)*1024}")
        for _ in range(2):
            if issued < 28:
                dma(issued); issued += 1
        A = (32, 48)[c // 7]
        for k in range(4):
            q = 4 * (c % 7) + k
            g(f"s_waitcnt lgkmcnt({3-k})")
            g(f"v_mfma_f32_32x32x16_bf16 {vr(A,16)}, {ar(4*q,4)}, {vr(64+4*k,4)}, {'0' if q == 0 else vr(A,16)}")
        if c == 7:
            redw(0); g("s_waitcnt lgkmcnt(0)")
        if c == 8:
            g(f"""s_bitcmp1_b32 {S_W}, 0
                  s_cbranch_scc1 L_p5_odd""")
            final()
            g("L_p5_odd:")
    stamp(g, opt, 17)
    g("s_nop 7\ns_nop 3")
    redw(1)
    g(f"""s_waitcnt lgkmcnt(0)
          s_barrier
          s_bitcmp1_b32 {S_W}, 0
          s_cbranch_scc0 L_p5_done""")
    final()
    g("L_p5_done:")
    stamp(g, opt, 18)
```

```python
import sys, os, struct
NAME = "adaLN_cond__softmax_full_mha__dense_activation_silu__prompt"

WS_E    = 0x0
FW      = 0x38000
MODG    = 0x4000
UV, BV  = 0x8000, 0xA000
FH, FQ, FO, FX, FG = 0x10000, 0x18000, 0x20000, 0x28000, 0x30000
TS      = 0x40000
HF, QF, KF, VF, OF, X1F = 0x100000, 0x300000, 0x500000, 0x700000, 0x900000, 0xB00000
WOF, W1F, W2F, H1F = 0xD00000, 0xD80000, 0xF40000, 0x1100000
WS_SIZE = 0x10000000
L_WQ = 0
L_JOB = 98304
L_SCR = 131072
L_SV, L_RED, L_STAT, L_UB, L_MA = L_SCR, L_SCR + 1024, L_SCR + 2048, L_SCR + 3072, L_SCR + 4096
L_CNT = 163840 - 64
L_K, L_V, VSTR = 0, 65536, 1056
L_EX = L_V + 64 * VSTR
LDS_BYTES = 160 * 1024
LOG2E = 1.4426950408889634
BIG = 0x7FF00000
J_W1, J_W2, J_WO, J_END = 96, 152, 216, 232

def f32(x): return "0x%08x" % struct.unpack("<I", struct.pack("<f", x))[0]

class G:
    def __init__(s): s.l = []; s.n = 0
    def __call__(s, t):
        for x in t.strip().split("\n"):
            x = x.strip()
            if x: s.l.append(x if x.endswith(":") else "    " + x)
    def lab(s, base): s.n += 1; return f"L_{base}_{s.n}"
def vr(i, n): return f"v[{i}:{i+n-1}]" if n > 1 else f"v{i}"
def ar(i, n): return f"a[{i}:{i+n-1}]" if n > 1 else f"a{i}"

S_ID, S_W, S_TAG, S_XCD, S_IDX, S_JOB = "s2", "s3", "s4", "s5", "s6", "s7"
WS, XS, WQ, JS, CS, OS = "s[8:11]", "s[12:15]", "s[16:19]", "s[20:23]", "s[24:27]", "s[28:31]"
S_JT, S_RS, S_S0, S_DST = "s50", "s51", "s52", "s53"
S_RB, S_CT, S_G, S_J = "s54", "s55", "s56", "s57"
S_QT, S_TB, S_C16, S_KQ, S_ROT = "s58", "s59", "s60", "s61", "s62"
V_L128 = "v126"
V_LANE, V_L16, V_L4 = "v1", "v2", "v3"
POLL_LIMIT = 100000
CODE_LINES = 12

def stamp(g, opt, k):
    if opt.get("ts"):
        g(f"""{'s_memrealtime' if opt['ts'] == 1 else 's_memtime'} s[34:35]
              s_waitcnt lgkmcnt(0)
              v_writelane_b32 v127, s34, {k}""")

def set_exec(g, mask):
    g(f"s_mov_b32 exec_lo, {mask & 0xffffffff:#x}\ns_mov_b32 exec_hi, {mask >> 32:#x}")

def poll_flags(g, vaddr, soff, mask):
    lp, done = g.lab("poll"), g.lab("got")
    full = mask == (1 << 64) - 1
    if not full: set_exec(g, mask)
    g(f"""s_mov_b32 s33, 0
          {lp}:
          buffer_load_dword v10, {vaddr}, {WS}, {soff} offen sc1
          s_waitcnt vmcnt(0)
          v_cmp_ne_u32 vcc, {S_TAG}, v10
          s_cbranch_vccz {done}
          s_add_u32 s33, s33, 1
          s_cmp_lt_u32 s33, {POLL_LIMIT}
          s_cbranch_scc1 {lp}
          {done}:""")
    if not full: g("s_mov_b64 exec, -1")

def set_flag(g, soff):
    g(f"""v_mov_b32 v10, {S_TAG}
          s_mov_b64 exec, 1
          buffer_store_dword v10, {V_L4}, {WS}, {soff} offen sc1
          s_mov_b64 exec, -1""")

def lds_spin(g, off, target, sleep=0):
    lp, done = g.lab("spin"), g.lab("spun")
    g(f"""v_mov_b32 v11, {L_CNT + off}
          s_mov_b32 s33, 0
          {lp}:
          ds_read_b32 v10, v11
          s_add_u32 s33, s33, 1
          s_waitcnt lgkmcnt(0)
          v_readfirstlane_b32 s32, v10
          s_cmp_ge_u32 s32, {target}
          s_cbranch_scc1 {done}
          {'s_sleep ' + str(sleep) if sleep else ''}
          s_cmp_lt_u32 s33, {POLL_LIMIT*4}
          s_cbranch_scc1 {lp}
          {done}:""")

def arrive_last(g, skip, off=4):
    g(f"""v_mov_b32 v11, {L_CNT + off}
          v_mov_b32 v10, 1
          s_mov_b64 exec, 1
          ds_add_rtn_u32 v10, v11, v10
          s_mov_b64 exec, -1
          s_waitcnt lgkmcnt(0)
          v_readfirstlane_b32 s32, v10
          s_cmp_lg_u32 s32, 3
          s_cbranch_scc1 {skip}""")

def finish(g, opt):
    if opt.get("ts"):
        g(f"""s_lshl_b32 s32, {S_ID}, 3
              s_add_u32 s32, s32, {S_W}
              s_lshl_b32 s32, s32, 8
              s_add_u32 s32, s32, {TS}
              buffer_store_dword v127, {V_L4}, {WS}, s32 offen""")
    g("s_waitcnt vmcnt(0)\ns_endpgm")

def tr_addr(g, vd, acc_order):
    sh = 8 if acc_order else 9
    g(f"""v_lshrrev_b32 v10, 5, {V_LANE}
          v_lshlrev_b32 {vd}, {sh}, v10
          v_bfe_u32 v10, {V_LANE}, 2, 2
          v_lshl_add_u32 {vd}, v10, 6, {vd}
          v_bfe_u32 v10, {V_LANE}, 4, 1
          v_lshl_add_u32 {vd}, v10, 5, {vd}
          v_and_b32 v10, 3, {V_LANE}
          v_lshl_add_u32 {vd}, v10, 3, {vd}""")
    return 512 if acc_order else 256

def unpack(g, dst, src, n, step=1):
    for i in range(n):
        g(f"v_lshlrev_b32 v{dst+2*i}, 16, v{src+step*i}\nv_and_b32 v{dst+2*i+1}, 0xffff0000, v{src+step*i}")

def prologue(g, opt):
    if opt.get("ts") == 1: g("s_memrealtime s[86:87]")
    g(f"""s_cmp_ge_u32 {S_ID}, 256
          s_cbranch_scc1 L_end
          s_load_dwordx16 s[64:79], s[0:1], 0
          s_load_dwordx4 s[80:83], s[0:1], 64
          s_load_dwordx2 s[84:85], s[0:1], 80
          v_lshrrev_b32 v4, 6, v0
          v_and_b32 {V_LANE}, 63, v0
          v_readfirstlane_b32 {S_W}, v4
          v_lshlrev_b32 {V_L16}, 4, {V_LANE}
          v_lshlrev_b32 {V_L4}, 2, {V_LANE}
          v_lshlrev_b32 {V_L128}, 7, {V_LANE}
          v_mov_b32 v10, 0
          v_mov_b32 v11, 0
          v_mov_b32 v12, 0
          v_mov_b32 v13, 0
          v_mov_b32 v4, {L_CNT}
          ds_write_b128 v4, v[10:13]
          ds_write_b128 v4, v[10:13] offset:16
          s_and_b32 {S_XCD}, {S_ID}, 7
          s_lshr_b32 {S_IDX}, {S_ID}, 3
          s_and_b32 s32, {S_XCD}, 1
          s_lshl_b32 s32, s32, 3
          s_and_b32 {S_J}, {S_IDX}, 7
          s_add_u32 {S_RB}, s32, {S_J}
          s_lshr_b32 s32, {S_XCD}, 1
          s_lshl_b32 s32, s32, 2
          s_lshr_b32 s33, {S_IDX}, 3
          s_add_u32 {S_CT}, s32, s33
          s_lshl_b32 s32, {S_XCD}, 2
          s_add_u32 {S_G}, s32, s33
          s_lshr_b32 s32, {S_IDX}, 1
          s_lshl_b32 s32, s32, 4
          s_lshl_b32 s33, {S_XCD}, 1
          s_add_u32 s32, s32, s33
          s_and_b32 s33, {S_IDX}, 1
          s_add_u32 {S_JOB}, s32, s33
          s_mov_b32 s11, 0x20000
          s_mov_b32 s15, 0x20000
          s_mov_b32 s19, 0x20000
          s_mov_b32 s23, 0x20000
          s_mov_b32 s27, 0x20000
          s_mov_b32 s31, 0x20000
          s_mov_b32 s10, {WS_SIZE}
          s_mov_b32 s14, 2097152
          s_mov_b32 s18, 1572864
          s_mov_b32 s22, 3145728
          s_mov_b32 s26, 1024
          s_mov_b32 s30, 2097152
          v_and_b32 v4, 15, {V_LANE}
          v_lshrrev_b32 v5, 4, {V_LANE}
          v_and_b32 v7, 7, {V_LANE}
          v_lshrrev_b32 v8, 3, {V_LANE}""")
    if opt.get("ts"): g("v_mov_b32 v127, 0")
    g("s_waitcnt lgkmcnt(0)")
    if opt.get("ts") == 1:
        g("v_writelane_b32 v127, s86, 31"); stamp(g, opt, 30)
    g(f"""s_load_dword {S_TAG}, s[84:85], {WS_E}
          s_mov_b32 s8, s84
          s_mov_b32 s9, s85
          s_mov_b32 s12, s64
          s_mov_b32 s13, s65
          s_mov_b32 s16, s66
          s_mov_b32 s17, s67
          s_mov_b32 s20, s78
          s_mov_b32 s21, s79
          s_mov_b32 s24, s76
          s_mov_b32 s25, s77
          s_mov_b32 s28, s80
          s_mov_b32 s29, s81""")
    g(f"""s_cmp_lt_u32 {S_W}, 4
          s_cbranch_scc1 L_first_lo
          s_cmp_eq_u32 {S_W}, 4
          s_cbranch_scc0 L_touch5
          v_mul_u32_u24 v4, 6144, v4
          v_lshl_add_u32 v4, v5, 10, v4
          s_mul_i32 s32, {S_IDX}, {16*6144}
          s_lshl_b32 s33, {S_XCD}, 7
          s_add_u32 s32, s32, s33
          s_mov_b32 exec_hi, 0
          buffer_load_dword v14, v4, {JS}, s32 offen
          s_branch L_touched
          L_touch5:
          s_cmp_eq_u32 {S_W}, 7
          s_cbranch_scc1 L_touch7
          v_mul_u32_u24 v4, 3072, v4
          v_lshl_add_u32 v4, v5, 10, v4
          s_mul_i32 s32, {S_IDX}, {16*3072}
          s_lshr_b32 s33, {S_XCD}, 1
          s_lshl_b32 s33, s33, 8
          s_add_u32 s32, s32, s33
          s_and_b32 s33, {S_W}, 1
          s_lshl_b32 s33, s33, 7
          s_add_u32 s32, s32, s33
          s_mov_b32 exec_hi, 0xffff
          buffer_load_dword v14, v4, {WQ}, s32 offen
          s_branch L_touched
          L_touch7:
          s_getpc_b64 s[44:45]
          L_pc:
          s_mul_i32 s32, {S_IDX}, {CODE_LINES*128}
          v_lshl_add_u32 v4, {V_LANE}, 7, s32
          v_cmp_gt_u32 vcc, L_codeend-L_pc, v4
          s_and_b32 exec_lo, vcc_lo, {(1 << CODE_LINES) - 1}
          s_mov_b32 exec_hi, 0
          s_cbranch_execz L_touched
          global_load_dword v14, v4, s[44:45]
          L_touched:
          s_mov_b64 exec, -1
          s_sub_u32 s36, {S_W}, 4
          s_branch L_first_done
          L_first_lo:
          v_lshlrev_b32 v9, 10, v7
          v_lshl_add_u32 v9, v8, 4, v9
          s_lshl_b32 s32, {S_ID}, 13
          s_lshl_b32 s33, {S_W}, 8
          s_add_u32 s32, s32, s33
          buffer_load_dwordx4 v[16:19], v9, {XS}, s32 offen
          buffer_load_dwordx4 v[20:23], v9, {XS}, s32 offen offset:128
          s_mov_b32 s36, {S_W}
          L_first_done:
          s_lshl_b32 s32, s36, 8
          buffer_load_dword v12, {V_L4}, {CS}, s32 offen""")
    g(f"""s_cmp_lt_u32 {S_JOB}, {J_W1}
          s_cbranch_scc0 L_j1
          s_cmp_lt_u32 {S_JOB}, 32
          s_cselect_b32 {S_JT}, 0, 5
          s_mov_b32 {S_RS}, 6144
          s_lshl_b32 {S_S0}, {S_JOB}, 6
          s_mov_b32 {S_DST}, 0
          s_branch L_jdone
          L_j1:
          s_cmp_lt_u32 {S_JOB}, {J_W2}
          s_cbranch_scc0 L_j2
          s_mov_b32 {S_JT}, 1
          s_mov_b32 s20, s72
          s_mov_b32 s21, s73
          s_mov_b32 s22, 1835008
          s_mov_b32 {S_RS}, 3584
          s_sub_u32 s32, {S_JOB}, {J_W1}
          s_lshl_b32 {S_S0}, s32, 6
          s_lshl_b32 {S_DST}, s32, 15
          s_add_u32 {S_DST}, {S_DST}, {W1F}
          s_branch L_jdone
          L_j2:
          s_cmp_lt_u32 {S_JOB}, {J_WO}
          s_cbranch_scc0 L_j3
          s_mov_b32 {S_JT}, 2
          s_mov_b32 s20, s74
          s_mov_b32 s21, s75
          s_mov_b32 s22, 1835008
          s_mov_b32 {S_RS}, 1024
          s_sub_u32 s32, {S_JOB}, {J_W2}
          s_lshr_b32 s33, s32, 4
          s_and_b32 s32, s32, 15
          s_mul_i32 {S_S0}, s33, {448*1024}
          s_lshl_b32 s34, s32, 6
          s_add_u32 {S_S0}, {S_S0}, s34
          s_mul_i32 {S_DST}, s32, {112*1024}
          s_mul_i32 s34, s33, {28*1024}
          s_add_u32 {S_DST}, {S_DST}, s34
          s_add_u32 {S_DST}, {S_DST}, {W2F}
          s_branch L_jdone
          L_j3:
          s_mov_b32 s20, s68
          s_mov_b32 s21, s69
          s_mov_b32 s22, 524288
          s_mov_b32 {S_RS}, 1024
          s_sub_u32 s32, {S_JOB}, {J_WO}
          s_lshl_b32 {S_S0}, s32, 6
          s_lshl_b32 {S_DST}, s32, 15
          s_add_u32 {S_DST}, {S_DST}, {WOF}
          s_cmp_lt_u32 {S_JOB}, {J_END}
          s_cselect_b32 {S_JT}, 3, 4
          L_jdone:
          s_barrier""")
    stamp(g, opt, 0)

def job_dma(g):
    g(f"""v_lshrrev_b32 v4, 2, {V_LANE}
          v_mul_lo_u32 v4, v4, {S_RS}
          v_and_b32 v5, 3, {V_LANE}
          v_lshl_add_u32 v4, v5, 4, v4
          s_lshl_b32 s37, {S_RS}, 4
          s_and_b32 s32, {S_IDX}, 1
          s_lshl_b32 s32, s32, 2
          s_lshl_b32 s33, s36, 3
          s_add_u32 s33, s33, s32
          s_mul_i32 s38, s33, s37
          s_add_u32 s38, s38, {S_S0}
          s_lshl_b32 s39, s33, 10
          s_add_u32 s39, s39, {L_JOB}
          s_lshl_b32 s32, s32, 1""")
    for kk in range(8):
        if kk == 4:
            g("""s_mul_i32 s33, s32, s37
                 s_sub_u32 s38, s38, s33
                 s_lshl_b32 s33, s32, 10
                 s_sub_u32 s39, s39, s33""")
        g(f"""s_mov_b32 m0, s39
              s_add_u32 s39, s39, 1024
              buffer_load_dwordx4 v4, {JS}, s38 offen lds
              s_add_u32 s38, s38, s37""")

def mod_gemv(g, vm_c, vm_strip, done):
    g(f"""s_waitcnt vmcnt({vm_c})
          v_lshlrev_b32 v13, 16, v12
          v_and_b32 v14, 0xffff0000, v12
          v_mul_f32 v24, {f32(-LOG2E)}, v13
          v_mul_f32 v25, {f32(-LOG2E)}, v14
          v_exp_f32 v24, v24
          v_exp_f32 v25, v25
          s_lshl_b32 s32, s36, 8
          v_add_f32 v24, 1.0, v24
          v_add_f32 v25, 1.0, v25
          v_rcp_f32 v24, v24
          v_rcp_f32 v25, v25
          s_add_u32 s32, s32, {L_SV}
          v_mul_f32 v13, v13, v24
          v_mul_f32 v14, v14, v25
          v_cvt_pk_bf16_f32 v13, v13, v14
          v_add_u32 v6, s32, {V_L4}
          ds_write_b32 v6, v13
          v_lshrrev_b32 v10, 5, {V_LANE}
          v_lshl_add_u32 v6, v10, 4, s32
          s_waitcnt lgkmcnt(0)""")
    for kk in range(8):
        g(f"ds_read_b128 {vr(32+4*kk,4)}, v6 offset:{kk*32}")
    o2 = tr_addr(g, "v5", False)
    g(f"""s_lshl_b32 s32, s36, 13
          s_add_u32 s32, s32, {L_JOB}
          v_add_u32 v5, s32, v5
          s_waitcnt vmcnt({vm_strip}) lgkmcnt(0)""")
    for kk in range(8):
        g(f"""ds_read_b64_tr_b16 {vr(64+4*kk,2)}, v5 offset:{kk*1024}
              ds_read_b64_tr_b16 {vr(66+4*kk,2)}, v5 offset:{kk*1024+o2}""")
        if kk == 5: g("s_waitcnt lgkmcnt(4)")
    for kk in range(8):
        if kk == 4: g("s_waitcnt lgkmcnt(0)")
        g(f"v_mfma_f32_32x32x16_bf16 {vr(96,16)}, {vr(32+4*kk,4)}, {vr(64+4*kk,4)}, {'0' if kk == 0 else vr(96,16)}")
    g(f"""v_and_b32 v5, 0x7c, {V_L4}
          v_add_u32 v5, {L_RED}, v5
          s_lshl_b32 s32, s36, 7
          v_add_u32 v6, s32, v5
          s_nop 7
          ds_write_b32 v6, v96""")
    arrive_last(g, done)
    g(f"""ds_read_b32 v26, v5
          ds_read_b32 v27, v5 offset:128
          ds_read_b32 v28, v5 offset:256
          ds_read_b32 v29, v5 offset:384
          s_lshr_b32 s32, {S_JOB}, 4
          s_cmp_eq_u32 s32, 1
          s_cselect_b32 s33, 1.0, 0
          s_cmp_eq_u32 s32, 4
          s_cselect_b32 s33, 1.0, s33
          s_waitcnt lgkmcnt(0)
          v_add_f32 v26, v26, v27
          v_add_f32 v28, v28, v29
          v_add_f32 v26, v26, v28
          v_cvt_pk_bf16_f32 v26, v26, v26
          v_and_b32 v26, 0xffff0000, v26
          v_add_f32 v26, s33, v26
          s_lshl_b32 s32, {S_JOB}, 7
          s_add_u32 s32, s32, {MODG}
          v_mov_b32_dpp v27, v26 quad_perm:[1,0,3,2] row_mask:0xf bank_mask:0xf
          v_cvt_pk_bf16_f32 v26, v26, v27
          v_mov_b32 v27, {S_TAG}
          s_mov_b64 exec, 0x55555555
          buffer_store_dwordx2 v[26:27], {V_L4}, {WS}, s32 offen sc1
          s_mov_b64 exec, -1""")

def phase0(g, opt):
    g(f"""s_cmp_ge_u32 {S_W}, 4
          s_cbranch_scc1 L_hi0""")
    XR = 16
    g(f"""s_cmp_lg_u32 {S_JT}, 0
          s_cbranch_scc1 L_lo_nojob""")
    job_dma(g)
    g(f"""s_waitcnt vmcnt(9)
          s_branch L_lo_ln
          L_lo_nojob:
          s_waitcnt vmcnt(1)
          L_lo_ln:
          s_waitcnt lgkmcnt(0)
          s_add_u32 {S_TAG}, {S_TAG}, 1
          s_mov_b32 s32, 0x3f803f80
          v_mov_b32 v24, 0
          v_mov_b32 v25, 0""")
    for i in range(8):
        g(f"v_dot2_f32_bf16 v24, v{XR+i}, s32, v24\nv_dot2_f32_bf16 v25, v{XR+i}, v{XR+i}, v25")
    g(f"""s_nop 2
          v_add_f32_dpp v24, v24, v24 row_ror:8 row_mask:0xf bank_mask:0xf
          v_add_f32_dpp v25, v25, v25 row_ror:8 row_mask:0xf bank_mask:0xf
          s_nop 1
          v_permlane16_swap_b32 v24, v25
          v_add_f32 v24, v24, v25
          v_mov_b32 v25, v24
          s_nop 1
          v_permlane32_swap_b32 v24, v25
          v_add_f32 v24, v24, v25
          ; [r8][s|q][w] floats
          v_lshlrev_b32 v6, 5, v7
          v_bfe_u32 v10, {V_LANE}, 4, 1
          v_lshl_add_u32 v6, v10, 4, v6
          s_lshl_b32 s32, {S_W}, 2
          s_add_u32 s32, s32, {L_STAT}
          v_add_u32 v6, s32, v6
          ds_write_b32 v6, v24
          v_mov_b32 v11, {L_CNT}
          v_mov_b32 v10, 1
          s_mov_b64 exec, 1
          ds_add_u32 v11, v10
          s_mov_b64 exec, -1
          s_cmp_lg_u32 {S_JT}, 0
          s_cbranch_scc1 L_lo_nopub""")
    mod_gemv(g, 8, 0, "L_lo_nopub")
    g("L_lo_nopub:")
    stamp(g, opt, 1)
    lds_spin(g, 0, 4)
    XN = 32
    g(f"""v_lshlrev_b32 v6, 5, v7
          v_add_u32 v6, {L_STAT}, v6
          ds_read_b128 v[24:27], v6
          ds_read_b128 v[28:31], v6 offset:16""")
    unpack(g, XN, XR, 8)
    g(f"""s_waitcnt lgkmcnt(0)
          v_add_f32 v24, v24, v25
          v_add_f32 v26, v26, v27
          v_add_f32 v28, v28, v29
          v_add_f32 v30, v30, v31
          v_add_f32 v24, v24, v26
          v_add_f32 v28, v28, v30
          v_mul_f32 v24, {f32(1/512)}, v24
          v_mul_f32 v28, {f32(1/512)}, v28
          v_fma_f32 v28, -v24, v24, v28
          v_max_f32 v28, 0, v28
          v_add_f32 v28, {f32(1e-5)}, v28
          v_rsq_f32 v28, v28
          s_nop 0
          v_mul_f32 v24, v24, v28""")
    for i in range(16):
        g(f"v_fma_f32 v{XN+i}, v{XN+i}, v28, -v24")
    g(f"""v_lshlrev_b32 v9, 9, v8
          v_lshl_add_u32 v9, v7, 4, v9
          s_lshr_b32 s32, {S_ID}, 2
          s_lshl_b32 s32, s32, 15
          s_lshl_b32 s33, {S_W}, 13
          s_add_u32 s32, s32, s33
          s_and_b32 s33, {S_ID}, 3
          s_lshl_b32 s33, s33, 7
          s_add_u32 s32, s32, s33
          s_add_u32 s37, s32, {HF}
          s_add_u32 s38, s37, 4096
          s_lshl_b32 s32, {S_ID}, 7
          s_add_u32 s39, s32, {FH}""")
    lp, done = g.lab("pollm"), g.lab("gotm")
    g(f"""v_lshrrev_b32 v10, 5, {V_LANE}
          v_mul_u32_u24 v10, {2048 - 512}, v10
          v_add_u32 v6, v10, {V_L16}
          s_lshl_b32 s32, {S_W}, 9
          s_add_u32 s42, s32, {L_MA}
          s_add_u32 s32, s32, {MODG}
          v_lshl_add_u32 v4, {V_LANE}, 3, s42
          v_lshl_add_u32 v5, v8, 4, s42
          s_mov_b32 s33, 0
          {lp}:
          buffer_load_dwordx4 v[48:51], v6, {WS}, s32 offen sc1
          s_waitcnt vmcnt(0)
          v_cmp_ne_u32 vcc, {S_TAG}, v49
          v_cmp_ne_u32 s[40:41], {S_TAG}, v51
          s_or_b64 vcc, vcc, s[40:41]
          s_cbranch_vccz {done}
          s_sleep {opt.get('msleep', 4)}
          s_add_u32 s33, s33, 1
          s_cmp_lt_u32 s33, {POLL_LIMIT}
          s_cbranch_scc1 {lp}
          {done}:
          v_mov_b32 v49, v50
          ds_write_b64 v4, v[48:49]
          s_waitcnt lgkmcnt(0)
          ds_read_b128 v[52:55], v5 offset:256
          ds_read_b128 v[60:63], v5
          ds_read_b128 v[56:59], v5 offset:384
          ds_read_b128 v[64:67], v5 offset:128""")
    stamp(g, opt, 2)
    for i in range(8):
        ra = 52 + i; rs = 60 + i
        if i == 0: g("s_waitcnt lgkmcnt(2)")
        if i == 4: g("s_waitcnt lgkmcnt(0)")
        g(f"""v_lshlrev_b32 v24, 16, v{ra}
              v_and_b32 v25, 0xffff0000, v{ra}
              v_lshlrev_b32 v26, 16, v{rs}
              v_and_b32 v27, 0xffff0000, v{rs}
              v_pk_fma_f32 v[24:25], {vr(XN+2*i,2)}, v[24:25], v[26:27]
              v_cvt_pk_bf16_f32 v{XR+i}, v24, v25""")
        if i == 3: g(f"buffer_store_dwordx4 {vr(XR,4)}, v9, {WS}, s37 offen sc1")
    g(f"""buffer_store_dwordx4 {vr(XR+4,4)}, v9, {WS}, s38 offen sc1
          s_lshl_b32 s32, {S_RB}, 2
          s_add_u32 s36, s32, {S_W}
          s_lshl_b32 s37, s36, 9
          s_add_u32 s37, s37, {FH}
          s_waitcnt vmcnt(0)""")
    arrive_last(g, "L_lo_nofh", 12)
    set_flag(g, "s39")
    g("L_lo_nofh:")
    stamp(g, opt, 3)
    g("s_barrier")
    poll_flags(g, V_L128, "s37", 0xf)
    stamp(g, opt, 4)
    phase1_gemm(g, opt)
    g("s_branch L_p1_end")
    g(f"""L_hi0:
          s_cmp_lg_u32 {S_JT}, 0
          s_cbranch_scc1 L_hi_job""")
    lds_spin(g, 4, 4, sleep=4)
    g("s_branch L_hi_nojob\nL_hi_job:")
    lds_spin(g, 0, 4, sleep=2)
    early = opt.get("early", 0)
    if early:
        g(f"""s_cmp_ge_u32 {S_JOB}, {early}
              s_cbranch_scc1 L_hi_nojob""")
        job_dma(g)
    g(f"L_hi_nojob:\ns_add_u32 {S_TAG}, {S_TAG}, 1")
    stamp(g, opt, 20)
    g(f"""v_lshrrev_b32 v4, 2, {V_LANE}
          v_mul_u32_u24 v4, 3072, v4
          v_and_b32 v5, 3, {V_LANE}
          v_lshl_add_u32 v4, v5, 4, v4
          s_lshl_b32 s32, {S_CT}, 3
          s_lshl_b32 s39, s36, 10
          s_add_u32 s32, s32, s36
          s_lshl_b32 s42, {S_CT}, 6""")
    for kk in range(8):
        g(f"""s_and_b32 s32, s32, 31
              s_mul_i32 s38, s32, {16*3072}
              s_add_u32 s38, s38, s42
              s_add_u32 s32, s32, 4""")
        for s in range(3):
            g(f"""s_add_u32 m0, s39, {s*32768 + kk*4096}
                  s_add_u32 s37, s38, {s*1024}
                  buffer_load_dwordx4 v4, {WQ}, s37 offen lds""")
    stamp(g, opt, 21)
    if early:
        g(f"""s_cmp_lg_u32 {S_JT}, 5
              s_cbranch_scc1 L_hi_nomod
              s_cmp_ge_u32 {S_JOB}, {early}
              s_cbranch_scc1 L_hi_nomod""")
        mod_gemv(g, 32, 24, "L_hi_nomod")
    g(f"""L_hi_nomod:
          s_waitcnt vmcnt(0)""")
    stamp(g, opt, 22)
    g(f"""s_barrier
          s_cmp_lt_u32 {S_JOB}, {max(early, 32)}
          s_cbranch_scc1 L_hi_have
          s_cmp_eq_u32 {S_JT}, 4
          s_cbranch_scc1 L_hi_done""")
    job_dma(g)
    g(f"""s_cmp_lg_u32 {S_JT}, 5
          s_cbranch_scc1 L_hi_have""")
    mod_gemv(g, 8, 0, "L_hi_done")
    g("s_branch L_hi_done\nL_hi_have:\ns_waitcnt vmcnt(0)")
    hi_jobs(g, opt)
    stamp(g, opt, 23)
    g("L_p1_end:")

def hi_jobs(g, opt):
    g(f"""s_sub_u32 s32, {S_JT}, 1
          s_cmp_ge_u32 s32, 3
          s_cbranch_scc1 L_hi_done""")
    o2 = tr_addr(g, "v5", True)
    g(f"""s_lshl_b32 s32, s36, 13
          s_add_u32 s37, s32, {S_DST}
          s_add_u32 s32, s32, {L_JOB}
          v_add_u32 v5, s32, v5""")
    for kk in range(8):
        g(f"""ds_read_b64_tr_b16 {vr(64+4*kk,2)}, v5 offset:{kk*1024}
              ds_read_b64_tr_b16 {vr(66+4*kk,2)}, v5 offset:{kk*1024+o2}""")
        if kk == 3: g("s_waitcnt lgkmcnt(0)")
    g(f"""s_lshl_b32 s42, {S_JOB}, 7
          s_add_u32 s42, s42, {FW}
          s_add_u32 s38, s37, 4096
          s_cmp_eq_u32 {S_JT}, 1
          s_cbranch_scc1 L_hi_t1
          s_cmp_eq_u32 {S_JT}, 2
          s_cselect_b32 s32, 3, 99
          s_cmp_eq_u32 s36, s32
          s_cselect_b32 s38, {BIG}, s38
          s_waitcnt lgkmcnt(0)""")
    for kk in range(8):
        g(f"buffer_store_dwordx4 {vr(64+4*kk,4)}, {V_L16}, {WS}, {'s37' if kk < 4 else 's38'} offen offset:{(kk&3)*1024} sc1")
    g("s_waitcnt vmcnt(0)")
    arrive_last(g, "L_hi_done")
    g("s_branch L_hi_flag\nL_hi_t1:")
    lp, done = g.lab("pollw"), g.lab("gotw")
    g(f"""v_lshlrev_b32 v6, 3, {V_LANE}
          s_lshl_b32 s32, s36, 9
          s_add_u32 s39, s32, {L_MA}
          s_add_u32 s32, s32, {MODG + 1536*4}
          v_mov_b32 v28, 0x3f803f80
          v_mov_b32 v29, 0x3f803f80
          v_mov_b32 v30, 0x3f803f80
          v_mov_b32 v31, 0x3f803f80
          s_mov_b32 s33, 0
          {lp}:
          buffer_load_dwordx2 v[12:13], v6, {WS}, s32 offen sc1
          buffer_load_dwordx2 v[14:15], v6, {WS}, s32 offen offset:2048 sc1
          s_waitcnt vmcnt(0)
          v_cmp_ne_u32 vcc, {S_TAG}, v13
          v_cmp_ne_u32 s[40:41], {S_TAG}, v15
          s_or_b64 vcc, vcc, s[40:41]
          s_cbranch_vccz {done}
          s_add_u32 s33, s33, 1
          s_cmp_lt_u32 s33, {POLL_LIMIT}
          s_cbranch_scc1 {lp}
          {done}:
          v_add_u32 v6, s39, {V_L4}
          ds_write_b32 v6, v12
          ds_write_b32 v6, v14 offset:256
          v_lshrrev_b32 v10, 5, {V_LANE}
          v_lshl_add_u32 v6, v10, 3, s39
          s_waitcnt lgkmcnt(0)""")
    for kk in range(8):
        g(f"""ds_read_b64 v[12:13], v6 offset:{kk*32}
              ds_read_b64 v[14:15], v6 offset:{kk*32+16}
              ds_read_b64 v[20:21], v6 offset:{256+kk*32}
              ds_read_b64 v[22:23], v6 offset:{256+kk*32+16}
              s_waitcnt lgkmcnt(0)""")
        R = 64 + 4 * kk
        g(f"v_mfma_f32_32x32x16_bf16 {vr(96,16)}, v[12:15], {vr(R,4)}, {'0' if kk == 0 else vr(96,16)}")
        for i in range(4):
            ra = 20 + i
            g(f"""v_lshlrev_b32 v8, 16, v{R+i}
                  v_and_b32 v9, 0xffff0000, v{R+i}
                  v_lshlrev_b32 v10, 16, v{ra}
                  v_and_b32 v11, 0xffff0000, v{ra}
                  v_mul_f32 v8, v8, v10
                  v_mul_f32 v9, v9, v11
                  v_cvt_pk_bf16_f32 v{32+4*kk+i}, v8, v9""")
        g(f"""s_nop 1
              v_mfma_f32_32x32x16_bf16 a[0:15], v[28:31], {vr(32+4*kk,4)}, {'0' if kk == 0 else 'a[0:15]'}
              buffer_store_dwordx4 {vr(32+4*kk,4)}, {V_L16}, {WS}, {'s37' if kk < 4 else 's38'} offen offset:{(kk&3)*1024} sc1""")
    g(f"""v_and_b32 v5, 0x7c, {V_L4}
          s_lshl_b32 s32, s36, 8
          s_add_u32 s32, s32, {L_UB}
          v_add_u32 v6, s32, v5
          s_nop 7
          ds_write_b32 v6, a0
          ds_write_b32 v6, v96 offset:128
          s_waitcnt vmcnt(0)""")
    arrive_last(g, "L_hi_done")
    g(f"""v_add_u32 v6, {L_UB}, {V_L4}
          ds_read_b32 v12, v6
          ds_read_b32 v13, v6 offset:256
          ds_read_b32 v14, v6 offset:512
          ds_read_b32 v15, v6 offset:768
          v_lshrrev_b32 v10, 5, {V_LANE}
          v_mul_u32_u24 v10, {BV - UV - 128}, v10
          v_add_u32 v5, {V_L4}, v10
          s_lshl_b32 s32, {S_JOB}, 7
          s_add_u32 s32, s32, {UV - J_W1*128}
          s_waitcnt lgkmcnt(0)
          v_add_f32 v12, v12, v13
          v_add_f32 v14, v14, v15
          v_add_f32 v12, v12, v14
          buffer_store_dword v12, v5, {WS}, s32 offen sc1
          s_waitcnt vmcnt(0)
          L_hi_flag:""")
    set_flag(g, "s42")
    g("L_hi_done:")

def phase1_gemm(g, opt):
    PD = opt.get("pd1", 6)
    g(f"""s_lshl_b32 s38, s36, 15
          s_add_u32 s38, s38, {HF}
          s_lshl_b32 s39, {S_CT}, 13""")
    def hload(q):
        if q % 4 == 0:
            g(f"s_and_b32 s39, s39, 32767\ns_add_u32 s32, s38, s39\ns_add_u32 s39, s39, 4096")
        g(f"buffer_load_dwordx4 {ar(4*q,4)}, {V_L16}, {WS}, s32 offen offset:{(q&3)*1024} sc1")
    for q in range(PD): hload(q)
    o2 = tr_addr(g, "v5", False)
    g("v_add_u32 v6, 65536, v5")
    BUF = [12, 24]
    ACC = [48, 64, 80]
    def reads(ks, s):
        b = BUF[ks & 1]
        va, off = ("v5", s * 32768 + ks * 1024) if s < 2 else ("v6", ks * 1024)
        g(f"ds_read_b64_tr_b16 {vr(b+4*s,2)}, {va} offset:{off}\nds_read_b64_tr_b16 {vr(b+4*s+2,2)}, {va} offset:{off+o2}")
    for s in range(3): reads(0, s)
    for ks in range(32):
        issued = min(32, ks + PD)
        if opt.get("fine") == 1 and ks % 4 == 0: stamp(g, opt, 24 + ks // 4)
        b = BUF[ks & 1]
        for s in range(3):
            last = ks == 31
            lg = (2 * (2 - s)) if last else 4
            g(f"s_waitcnt vmcnt({issued-ks-1}) lgkmcnt({lg})" if s == 0 else f"s_waitcnt lgkmcnt({lg})")
            c = '0' if ks == 0 else vr(ACC[s], 16)
            A, B = (vr(b + 4 * s, 4), ar(4 * ks, 4)) if s < 2 else (ar(4 * ks, 4), vr(b + 4 * s, 4))
            g(f"v_mfma_f32_32x32x16_bf16 {vr(ACC[s],16)}, {A}, {B}, {c}")
            if not last: reads(ks + 1, s)
            if s == 2 and ks + PD < 32: hload(ks + PD)
    stamp(g, opt, 5)
    g(f"""s_lshl_b32 s32, {S_CT}, 17
          s_lshl_b32 s33, s36, 10
          s_add_u32 s32, s32, s33
          s_add_u32 s37, s32, {QF}
          s_add_u32 s38, s32, {QF + 65536}
          s_add_u32 s39, s32, {KF}
          s_add_u32 s42, s32, {KF + 65536}
          s_add_u32 s43, s32, {VF}
          s_mov_b32 s32, {f32(0.25*LOG2E)}
          ; k slot: swap bits 2,3 of the token
          v_and_b32 v7, 0x33, {V_LANE}
          v_bfe_u32 v8, {V_LANE}, 2, 1
          v_lshl_or_b32 v7, v8, 3, v7
          v_bfe_u32 v8, {V_LANE}, 3, 1
          v_lshl_or_b32 v7, v8, 2, v7
          v_lshlrev_b32 v7, 4, v7
          v_bfe_u32 v8, {V_LANE}, 4, 1
          v_lshlrev_b32 v8, 16, v8
          v_lshrrev_b32 v9, 5, {V_LANE}
          v_lshl_add_u32 v8, v9, 8, v8
          v_and_b32 v9, 15, {V_LANE}
          v_lshl_add_u32 v8, v9, 4, v8""")
    for s in (1, 2, 0):
        if s == 0:
            for i in range(16): g(f"v_mul_f32 v{ACC[0]+i}, s32, v{ACC[0]+i}")
        for i in range(8):
            g(f"v_cvt_pk_bf16_f32 v{12+8*s+i}, v{ACC[s]+2*i}, v{ACC[s]+2*i+1}")
            if i & 3 == 3:
                va, so, off = [(V_L16, ("s37", "s38")[i >> 2], 0), ("v7", ("s39", "s42")[i >> 2], 0), ("v8", "s43", 512 * (i >> 2))][s]
                g(f"buffer_store_dwordx4 {vr(12+8*s+i-3,4)}, {va}, {WS}, {so} offen offset:{off} sc1")
    g(f"""s_lshl_b32 s37, {S_CT}, 4
          s_add_u32 s37, s37, {S_RB}
          s_lshl_b32 s37, s37, 7
          s_add_u32 s37, s37, {FQ}
          s_waitcnt vmcnt(0)""")
    arrive_last(g, "L_lo_nofq", 16)
    set_flag(g, "s37")
    g("L_lo_nofq:")
    stamp(g, opt, 6)
    g(f"""s_cmp_lg_u32 {S_W}, 0
          s_cbranch_scc1 L_p1_end
          s_lshr_b32 s32, {S_G}, 1
          s_lshl_b32 s32, s32, 11
          s_add_u32 s32, s32, {FQ}""")
    poll_flags(g, V_L128, "s32", 0xffff)

def build(opt):
    from phases2 import phase2, phase3, phase4, phase5
    opt['_tail'] = []
    g = G()
    prologue(g, opt)
    phase0(g, opt)
    stop = opt.get("stop", 9)
    if stop <= 1: finish(g, opt)
    for k, ph in ((2, phase2), (3, phase3), (4, phase4), (5, phase5)):
        if stop >= k:
            ph(g, opt)
            if stop == k or k == 5:
                epoch_update(g); finish(g, opt)
                break
    g("L_end:\ns_endpgm")
    for fn in opt["_tail"]: fn(g)
    g("L_codeend:")
    head = open(os.path.join(os.path.dirname(os.path.abspath(__file__)), "..", "cdna_kernels", NAME + ".s.ref")).read()
    cm = [l for l in head.split("\n") if l.startswith(";") and "@launch" not in l and "Override launch" not in l and "grid=ceil" not in l]
    out = cm + [f"; @launch grid=(256,1,1) block=(512,1,1) lds={LDS_BYTES}",
        '.amdgcn_target "amdgcn-amd-amdhsa--gfx950"', ".text", f".globl {NAME}_kernel", ".p2align 8",
        f".type {NAME}_kernel,@function", f"{NAME}_kernel:"] + g.l + [
        '.section .rodata,"a"', ".p2align 6", f".amdhsa_kernel {NAME}_kernel",
        "  .amdhsa_next_free_vgpr 256", "  .amdhsa_next_free_sgpr 96", "  .amdhsa_accum_offset 128",
        "  .amdhsa_group_segment_fixed_size 0", "  .amdhsa_kernarg_size 88", "  .amdhsa_user_sgpr_count 2",
        "  .amdhsa_user_sgpr_kernarg_segment_ptr 1", "  .amdhsa_system_sgpr_workgroup_id_x 1",
        ".end_amdhsa_kernel", ""]
    return "\n".join(out)

def epoch_update(g):
    lab = g.lab("noep")
    g(f"""s_or_b32 s32, {S_ID}, {S_W}
          s_cmp_lg_u32 s32, 0
          s_cbranch_scc1 {lab}
          s_mov_b32 s32, {WS_E}""")
    set_flag(g, "s32")
    g(f"{lab}:")

if __name__ == "__main__":
    opt = {}
    outp = None
    for a in sys.argv[1:]:
        if "=" in a:
            k, v = a.split("="); opt[k] = int(v)
        else: outp = a
    asm = build(opt)
    import asmcheck
    bad = asmcheck.check(asm)
    open(outp or f"cdna_kernels/{NAME}.s", "w").write(asm)
    sys.exit(1 if bad else 0)
```
